```python
import torch

def _softmax(x, axis=-1):
    return torch.softmax(x, dim=axis)
def _gelu(x):
    return torch.nn.functional.gelu(x, approximate="tanh")
def _silu(x):
    return torch.nn.functional.silu(x)
def _sigmoid(x):
    return torch.sigmoid(x)
def _layernorm(x, axis=-1, eps=1e-5):
    m = x.mean(dim=axis, keepdim=True)
    v = x.var(dim=axis, keepdim=True, unbiased=False)
    return (x - m) / torch.sqrt(v + eps)
def _scatter_add(tgt, idx, src, axis=0):
    return tgt.clone().index_add_(axis, idx, src)
def _segment_sum(src, seg, n):
    out = torch.zeros((n,) + src.shape[1:], dtype=src.dtype)
    return out.index_add_(0, seg, src)
def _pad(x, pw):
    flat = tuple(v for pair in reversed(pw) for v in pair)
    return torch.nn.functional.pad(x, flat)

kernel_name = 'sequential_preLN__mha_block_cached__glu_gated_glu__decode'

def setup_inputs():

    _w = (lambda a: (lambda t: t.to(torch.bfloat16) if t.is_floating_point() else t)(torch.as_tensor(a)))
    def _A_setup():
        B, Sq, D = 4, 1, 512
        H, Sk, Dh = 32, 8192, 128
        return {
            "x": _w((lambda *s: torch.randn(*s, dtype=torch.bfloat16) * 0.05)(B, Sq, D)),
            "k_cache": _w((lambda *s: torch.randn(*s, dtype=torch.bfloat16) * 3.2)(B, H, Sk, Dh)),
            "v_cache": _w((lambda *s: torch.randn(*s, dtype=torch.bfloat16) * 0.4)(B, H, Sk, Dh)),
            "wq": _w((lambda *s: torch.randn(*s, dtype=torch.bfloat16) * 3.2)(D, H * Dh) * (D ** -0.5)),
            "wo": _w((lambda *s: torch.randn(*s, dtype=torch.bfloat16) * 0.4)(H * Dh, D) * ((H * Dh) ** -0.5)),
        }
    _A_in = _A_setup()

    def _B_setup():
        B, S, D, F = 4, 1, 512, 1792
        return {
            "x": _w((lambda *s: torch.randn(*s, dtype=torch.bfloat16) * 0.05)(B, S, D)),
            "w_gate": _w((lambda *s: torch.randn(*s, dtype=torch.bfloat16) * 0.1)(D, F)),
            "w_up": _w((lambda *s: torch.randn(*s, dtype=torch.bfloat16) * 0.05)(D, F)),
            "w_down": _w((lambda *s: torch.randn(*s, dtype=torch.bfloat16) * 0.05)(F, D)),
        }
    _B_in = _B_setup()

    return {
        "A_x": _A_in["x"],
        "A_k_cache": _A_in["k_cache"],
        "A_v_cache": _A_in["v_cache"],
        "A_wq": _A_in["wq"],
        "A_wo": _A_in["wo"],
        "B_x": _B_in["x"],
        "B_w_gate": _B_in["w_gate"],
        "B_w_up": _B_in["w_up"],
        "B_w_down": _B_in["w_down"],
    }

def reference(A_x, A_k_cache, A_v_cache, A_wq, A_wo, B_x, B_w_gate, B_w_up, B_w_down):
    def _A_ref(x, k_cache, v_cache, wq, wo):
        B, Sq, D = x.shape
        H, Dh = 32, 128
        q = (lambda x, *d: x.permute(*d))((x @ wq).reshape(B, Sq, H, Dh), 0, 2, 1, 3)
        scores = torch.einsum("bhqd,bhkd->bhqk", q, k_cache) * (Dh ** -0.5)
        p = _softmax(scores, axis=-1)
        o = torch.einsum("bhqk,bhkd->bhqd", p, v_cache)
        return (lambda x, *d: x.permute(*d))(o, 0, 2, 1, 3).reshape(B, Sq, H * Dh) @ wo

    def _B_ref(x, w_gate, w_up, w_down):
        g = torch.einsum("bsd,df->bsf", x, w_gate)
        u = torch.einsum("bsd,df->bsf", x, w_up)
        h = _sigmoid(g) * u
        return torch.einsum("bsf,fd->bsd", h, w_down)

    x = A_x
    h = x + _A_ref(_layernorm(x, axis=-1), A_k_cache, A_v_cache, A_wq, A_wo)
    h2 = h + _B_ref(_layernorm(h, axis=-1), B_w_gate, B_w_up, B_w_down)
    return h2
```

```python
import re

_REG = re.compile(r"^(-|abs\()?\|?([vsa])(\d+)\|?\)?$")
_RNG = re.compile(r"^(-)?([vsa])\[(\d+):(\d+)\]$")
TRANS = ("v_exp_f32", "v_log_f32", "v_rcp_f32", "v_rsq_f32", "v_sqrt_f32", "v_sin_f32", "v_cos_f32")


def _split_ops(s):
    out, depth, cur = [], 0, ""
    for ch in s:
        if ch == "[":
            depth += 1
        if ch == "]":
            depth -= 1
        if ch == "," and depth == 0:
            out.append(cur.strip())
            cur = ""
        else:
            cur += ch
    if cur.strip():
        out.append(cur.strip())
    return out


def _regs(tok):
    tok = tok.strip()
    if tok == "vcc":
        return {("s", 106), ("s", 107)}
    if tok == "exec":
        return {("s", 126), ("s", 127)}
    if tok == "m0":
        return {("s", 124)}
    m = _REG.match(tok)
    if m:
        return {(m.group(2), int(m.group(3)))}
    m = _RNG.match(tok)
    if m:
        return {(m.group(2), i) for i in range(int(m.group(3)), int(m.group(4)) + 1)}
    return set()


class Ins:
    __slots__ = ("text", "op", "dst", "src", "kind", "dpp", "srcC", "srcAB", "ws", "wide_store_data")


def parse(text):
    t = text.split(";")[0].strip()
    ins = Ins()
    ins.text = text
    parts = t.split(None, 1)
    op = parts[0]
    ins.op = op
    rest = parts[1] if len(parts) > 1 else ""
    ops = _split_ops(rest)
    mods = ""
    if ops:
        last = ops[-1].split(None, 1)
        if len(last) > 1 and not last[0].endswith(":"):
            ops[-1] = last[0]
            mods = last[1]
    ins.dpp = op.endswith("_dpp") or "row_" in mods or "quad_perm" in mods
    ins.dst, ins.src = set(), set()
    ins.srcC, ins.srcAB = set(), set()
    ins.wide_store_data = set()
    ins.ws = 1
    R = [_regs(o) for o in ops]
    if op == "s_nop":
        ins.kind = "nop"
        ins.ws = int(ops[0], 0) + 1
    elif op.startswith("v_mfma"):
        ins.kind = "mfma"
        ins.dst = R[0]
        ins.srcAB = R[1] | R[2]
        ins.srcC = R[3]
        ins.src = ins.srcAB | ins.srcC
    elif op.startswith("v_"):
        ins.kind = "valu"
        if op.startswith("v_permlane") and "swap" in op:
            ins.dst = R[0] | R[1]
            ins.src = R[0] | R[1]
        else:
            ins.dst = set(R[0])
            for r in R[1:]:
                ins.src |= r
            if op.startswith(("v_add_co", "v_addc_co", "v_sub_co", "v_subb_co")):
                ins.dst |= R[1]
                ins.src -= R[1] if not op.startswith(("v_addc", "v_subb")) else set()
            if op.startswith(("v_dot2c", "v_fmac", "v_pk_fmac")) or ins.dpp:
                ins.src |= R[0]
            if op.startswith("v_dot2c"):
                ins.srcC = set(R[0])
                ins.srcAB = R[1] | R[2]
            elif op.startswith("v_dot2"):
                ins.srcC = set(R[3])
                ins.srcAB = R[1] | R[2]
    elif op.startswith("ds_"):
        ins.kind = "ds"
        if op.startswith(("ds_read", "ds_bpermute", "ds_permute", "ds_swizzle")) or "_rtn" in op:
            ins.dst = R[0]
            for r in R[1:]:
                ins.src |= r
        else:
            for r in R:
                ins.src |= r
    elif op.startswith(("buffer_", "global_", "flat_")):
        ins.kind = "vmem"
        is_load = "_load" in op
        ret_atomic = "atomic" in op and "sc0" in mods
        if op.startswith("global_atomic") and ret_atomic:
            ins.dst = R[0]
            for r in R[1:]:
                ins.src |= r
        elif op.startswith("buffer_atomic") and ret_atomic:
            ins.dst = R[0]
            for r in R:
                ins.src |= r
        elif is_load and " lds" not in (" " + mods):
            ins.dst = R[0]
            for r in R[1:]:
                ins.src |= r
            if "d16" in op:
                ins.src |= R[0]
        else:
            for r in R:
                ins.src |= r
            if "store_dwordx4" in op or "store_dwordx3" in op:
                ins.wide_store_data = R[0] if op.startswith("buffer_") else R[1]
    else:
        ins.kind = "salu"
        if R and not op.startswith(("s_cmp", "s_cbranch", "s_branch", "s_waitcnt", "s_barrier", "s_bitcmp", "s_sleep", "s_endpgm", "s_setprio")):
            ins.dst = R[0]
            for r in R[1:]:
                ins.src |= r
        else:
            for r in R:
                ins.src |= r
    return ins


def required(p, c):
    need = 0
    pv = {r for r in p.dst if r[0] in "va"}
    ps = {r for r in p.dst if r[0] == "s"}
    if p.kind == "valu":
        is_dot = p.op.startswith("v_dot")
        if pv & c.src:
            if c.kind == "valu" and c.dpp:
                need = max(need, 2)
            if c.op.startswith("v_permlane"):
                need = max(need, 2)
            if c.op.startswith(("v_readlane", "v_readfirstlane")):
                need = max(need, 1)
            if p.op.startswith(TRANS):
                need = max(need, 1)
            if c.kind == "mfma":
                need = max(need, 2)
        if is_dot and (pv & (c.src | c.dst)):
            same = c.op.split("_e")[0] == p.op.split("_e")[0]
            if same and not (pv & c.srcAB):
                pass
            else:
                need = max(need, 3)
        if ps & c.src:
            if c.kind in ("valu", "mfma"):
                need = max(need, 4 if c.op.startswith(("v_readlane", "v_writelane")) else 2)
            if c.kind == "vmem":
                need = max(need, 5)
            if c.kind == "salu":
                need = max(need, 1)
            if ("s", 126) in ps and c.kind == "valu":
                need = max(need, 5)
    if p.kind == "mfma":
        passes = 8 if "32x32" in p.op else 4
        tab = {4: (8, 6, 3), 8: (12, 10, 7)}[passes]
        if c.kind == "mfma":
            if pv & c.srcAB:
                need = max(need, tab[0])
            if pv & c.srcC and not (c.srcC == p.dst and c.op == p.op):
                need = max(need, tab[1])
        elif pv & (c.src | c.dst):
            need = max(need, tab[0])
        if c.kind == "valu" and (p.srcC & c.dst):
            need = max(need, tab[2])
    if p.wide_store_data and (p.wide_store_data & c.dst):
        need = max(need, 2)
    if p.kind == "salu" and ("s", 124) in ps and c.kind in ("vmem", "ds"):
        need = max(need, 1)
    return need


class Asm:
    def __init__(self):
        self.lines = []

    def __call__(self, s):
        for ln in s.strip("\n").split("\n"):
            ln = ln.strip()
            if ln:
                self.lines.append(ln)

    def label(self, name):
        self.lines.append(name + ":")

    def render(self):
        out, hist = [], []
        npad = 0
        for ln in self.lines:
            code = ln.split(";")[0].strip()
            if not code or code.endswith(":") or code.startswith("."):
                out.append(ln if code.endswith(":") else "    " + ln)
                continue
            c = parse(ln)
            dist, pad = 0, 0
            for p in reversed(hist):
                if dist >= 12:
                    break
                need = required(p, c)
                if need > dist:
                    pad = max(pad, need - dist)
                dist += p.ws
            if pad:
                npad += 1
                nop = parse(f"s_nop {pad - 1}")
                out.append(f"    s_nop {pad - 1}")
                hist.append(nop)
            out.append("    " + ln)
            hist.append(c)
            hist = hist[-16:]
        return "\n".join(out), npad
```

```python
import sys
from asmlib import Asm

KN = "sequential_preLN__mha_block_cached__glu_gated_glu__decode_kernel"
HEAD = open("sequential_preLN__mha_block_cached__glu_gated_glu__decode.s.ref").read().split("; Override launch")[0]

L_SC = 0
L_XN = 16384
L_QP = L_XN + 2048
L_ACC = L_QP + 2048
L_MISC = L_ACC + 4096
L_RED = L_MISC + 256
L_OB = L_RED + 2048
L_HN = L_OB + 1024
HN_P = 1088
L_HR = L_HN + 4 * HN_P
L_WO = L_HR + 4096
WO_P = 544
L_STG = L_WO + 128 * WO_P
STG_SZ = 9216
L_RED1 = L_SC
L_HHL = L_SC + 8192
HHL_P = 144
L_END = L_STG + 4 * STG_SZ
LDS_BYTES = (L_END + 255) // 256 * 256

W_ML = 0x000000
W_CNT = 0x010000
W_XID = 0x020000
W_Y = 0x030000
W_H = 0x070000
W_HH = 0x072000
W_O = 0x080000
W_PO = 0x180000
W_P = 0x200000
WS_SIZE = 0x800000
STAMP_OFF = 512 << 20

SCALE = 0x3DB504F3
LOG2E = 0x3FB8AA3B
EPS = 0x3727C5AC
SPIN = 40000

sX, sK, sV, sWQ, sWO, sWG, sWU, sWD, sOUT, sDBG, sWS = 4, 6, 8, 10, 12, 16, 18, 20, 22, 24, 26
SRD_K, SRD_V, SRD_WS, SRD_T = 28, 32, 36, 40
sWAVE, sXC, sR, sHL, sH, sB, sHALF, sLIST = 44, 45, 46, 47, 48, 49, 50, 51
sT0, sT1, sT2, sT3 = 52, 53, 54, 55
sKOFF, sVOFF, sCNT = 56, 57, 58
sSCALE, sLOG2E, sMASK, sSELLO, sSELHI = 59, 60, 61, 62, 63
sHW = 64
sSPIN = 65
sTAIL = 66
sEX = 68
sST = 72
sLOCAL = 70


def gen(DIST=2, stamps=False, local=False, wnt='nt', qnt='', fill=2, prio=0, deep=0):
    WNT = wnt
    A = Asm()
    nst = [0]

    def stamp(kind=1):
        if stamps == kind or (stamps and kind == 0):
            A(f"s_memrealtime s[{sST + 2 * nst[0]}:{sST + 2 * nst[0] + 1}]")
            nst[0] += 1

    def wave_allreduce(op, v, t):
        for r in (8, 4, 2, 1):
            A(f"{op}_dpp v{v}, v{v}, v{v} row_ror:{r} row_mask:0xf bank_mask:0xf")
        A(f"v_mov_b32 v{t}, v{v}")
        A(f"v_permlane16_swap_b32 v{v}, v{t}")
        A(f"{op} v{v}, v{v}, v{t}")
        A(f"v_mov_b32 v{t}, v{v}")
        A(f"v_permlane32_swap_b32 v{v}, v{t}")
        A(f"{op} v{v}, v{v}, v{t}")

    def reduce8(a):
        for j in (0, 2, 4, 6):
            A(f"v_permlane16_swap_b32 v{a + j}, v{a + j + 1}")
        for j in (0, 2, 4, 6):
            A(f"v_add_f32 v{a + j}, v{a + j}, v{a + j + 1}")
        for j in (0, 4):
            A(f"v_permlane32_swap_b32 v{a + j}, v{a + j + 2}")
        for j in (0, 4):
            A(f"v_add_f32 v{a + j}, v{a + j}, v{a + j + 2}")

    def rbf(v):
        A(f"v_cvt_pk_bf16_f32 v{v}, v{v}, v{v}")
        A(f"v_lshlrev_b32 v{v}, 16, v{v}")

    def layernorm(pk, f, t):
        for j in range(4):
            A(f"v_lshlrev_b32 v{f + 2 * j}, 16, v{pk + j}")
            A(f"v_and_b32 v{f + 2 * j + 1}, s{sMASK}, v{pk + j}")
        A(f"v_add_f32 v{t}, v{f}, v{f + 1}")
        for j in range(2, 8):
            A(f"v_add_f32 v{t}, v{t}, v{f + j}")
        wave_allreduce("v_add_f32", t, t + 1)
        A(f"v_mul_f32 v{t}, 0x3b000000, v{t}")
        A(f"v_sub_f32 v{t + 1}, v{f}, v{t}")
        A(f"v_mul_f32 v{t + 2}, v{t + 1}, v{t + 1}")
        for j in range(1, 8):
            A(f"v_sub_f32 v{t + 1}, v{f + j}, v{t}")
            A(f"v_fmac_f32 v{t + 2}, v{t + 1}, v{t + 1}")
        wave_allreduce("v_add_f32", t + 2, t + 1)
        A(f"v_mul_f32 v{t + 2}, 0x3b000000, v{t + 2}")
        rbf(t)
        rbf(t + 2)
        A(f"v_add_f32 v{t + 2}, 0x{EPS:08x}, v{t + 2}")
        rbf(t + 2)
        A(f"v_sqrt_f32 v{t + 2}, v{t + 2}")
        rbf(t + 2)
        A(f"v_rcp_f32 v{t + 3}, v{t + 2}")
        for j in range(0, 8, 2):
            A(f"v_sub_f32 v{f + j}, v{f + j}, v{t}")
            A(f"v_sub_f32 v{f + j + 1}, v{f + j + 1}, v{t}")
            A(f"v_cvt_pk_bf16_f32 v{t + 1}, v{f + j}, v{f + j + 1}")
            A(f"v_lshlrev_b32 v{f + j}, 16, v{t + 1}")
            A(f"v_and_b32 v{f + j + 1}, s{sMASK}, v{t + 1}")
        for j in range(8):
            A(f"v_mul_f32 v{t + 4}, v{f + j}, v{t + 3}")
            A(f"v_fma_f32 v{t + 5}, -v{t + 4}, v{t + 2}, v{f + j}")
            A(f"v_fma_f32 v{f + j}, v{t + 5}, v{t + 3}, v{t + 4}")
        for j in range(0, 8, 2):
            A(f"v_cvt_pk_bf16_f32 v{pk + j // 2}, v{f + j}, v{f + j + 1}")
        for j in range(4):
            A(f"v_lshlrev_b32 v{f + 2 * j}, 16, v{pk + j}")
            A(f"v_and_b32 v{f + 2 * j + 1}, s{sMASK}, v{pk + j}")

    lab = [0]

    def poll(loads, regs, name):
        lab[0] += 1
        L = f"L_poll{lab[0]}_{name}"
        A(f"s_mov_b32 s{sSPIN}, 0")
        A.label(L)
        for l in loads:
            A(l)
        A("s_waitcnt vmcnt(0)")
        A(f"v_cmp_eq_u32 vcc, -1, v{regs[0]}")
        for r in regs[1:]:
            A(f"v_cmp_eq_u32 s[{sT2}:{sT3}], -1, v{r}")
            A(f"s_or_b64 vcc, vcc, s[{sT2}:{sT3}]")
        A(f"s_add_u32 s{sSPIN}, s{sSPIN}, 1")
        A(f"s_cmp_gt_u32 s{sSPIN}, {SPIN}")
        A(f"s_cbranch_scc1 {L}_x")
        A("s_cmp_lg_u64 vcc, 0")
        A(f"s_cbranch_scc1 {L}")
        A.label(L + "_x")

    A(f"""
    s_cmp_ge_u32 s2, 256
    s_cbranch_scc1 L_end
    s_load_dwordx16 s[4:19], s[0:1], 0
    s_load_dwordx8 s[20:27], s[0:1], 64
    v_lshrrev_b32 v3, 6, v0
    v_and_b32 v1, 63, v0
    v_readfirstlane_b32 s{sWAVE}, v3
    v_lshlrev_b32 v2, 4, v1
    s_and_b32 s{sXC}, s2, 7
    s_lshr_b32 s{sR}, s2, 3
    s_lshr_b32 s{sHL}, s{sR}, 3
    s_lshl_b32 s{sH}, s{sHL}, 3
    s_add_u32 s{sH}, s{sH}, s{sXC}
    s_bfe_u32 s{sB}, s{sR}, 0x20001
    s_and_b32 s{sHALF}, s{sR}, 1
    s_lshl_b32 s{sLIST}, s{sB}, 5
    s_add_u32 s{sLIST}, s{sLIST}, s{sH}
    s_lshl_b32 s{sLIST}, s{sLIST}, 1
    s_add_u32 s{sLIST}, s{sLIST}, s{sHALF}
    s_lshl_b32 s{sT0}, s{sLIST}, 20
    s_mov_b32 s{sSCALE}, 0x{SCALE:08x}
    s_mov_b32 s{sLOG2E}, 0x{LOG2E:08x}
    s_mov_b32 s{sMASK}, 0xffff0000
    s_mov_b32 s{sSELLO}, 0x05040100
    s_mov_b32 s{sSELHI}, 0x07060302
    s_mov_b32 s{SRD_K + 2}, 0x100000
    s_mov_b32 s{SRD_K + 3}, 0x20000
    s_mov_b32 s{SRD_V + 2}, 0x100000
    s_mov_b32 s{SRD_V + 3}, 0x20000
    s_mov_b32 s{SRD_WS + 2}, 0x{WS_SIZE:x}
    s_mov_b32 s{SRD_WS + 3}, 0x20000
    s_mov_b32 s{SRD_T + 3}, 0x20000
    v_bfe_u32 v5, v0, 4, 2          ; g
    v_and_b32 v6, 15, v0            ; c
    """)
    if stamps:
        for i in range(1, 14):
            A(f"s_mov_b64 s[{sST + 2 * i}:{sST + 2 * i + 1}], 0")
    stamp(0)
    A(f"""
    s_waitcnt lgkmcnt(0)
    s_add_u32 s{SRD_K}, s{sK}, s{sT0}
    s_addc_u32 s{SRD_K + 1}, s{sK + 1}, 0
    s_add_u32 s{SRD_V}, s{sV}, s{sT0}
    s_addc_u32 s{SRD_V + 1}, s{sV + 1}, 0
    s_mov_b32 s{SRD_WS}, s{sWS}
    s_mov_b32 s{SRD_WS + 1}, s{sWS + 1}
    s_cmp_ge_u32 s{sWAVE}, 4
    s_cbranch_scc1 L_helper
    """)

    RING = 128
    Q = 8
    T = 12
    CA, CB = 16, 17
    TM = 18
    MX = 24
    ACC = 32
    PB = (40, 48)
    PLO = 56
    NH = 64
    issued = []
    nxt = [0]

    def slot(j):
        if deep and 8 <= j < 12:
            return 64 + 16 * (j - 8)
        if deep and 12 <= j < 16:
            return RING + 16 * (j - 12)
        return RING + 16 * (j % 8)

    def issue():
        j = nxt[0]
        if j >= 2 * NH:
            return
        srd, so = (SRD_K, sKOFF) if j < NH else (SRD_V, sVOFF)
        r = slot(j)
        for i in range(4):
            A(f"buffer_load_dwordx4 v[{r + 4 * i}:{r + 4 * i + 3}], v2, s[{srd}:{srd + 3}], s{so} offen offset:{1024 * i} nt")
        A(f"s_add_u32 s{so}, s{so}, {4096 if j % 2 == 0 else 32768 - 4096}")
        issued.append(j)
        nxt[0] += 1

    def wait_half(j):
        assert issued[0] == j, (issued, j)
        issued.pop(0)
        A(f"s_waitcnt vmcnt({4 * len(issued)})")

    def kcompute(j):
        r = slot(j)
        for q in range(4):
            for i in range(4):
                if q == 0:
                    A(f"v_dot2_f32_bf16 v{T + i}, v{r + 4 * i}, v{Q}, 0")
                else:
                    A(f"v_dot2_f32_bf16 v{T + i}, v{r + 4 * i + q}, v{Q + q}, v{T + i}")
        for ro in (8, 4, 2):
            for i in range(4):
                A(f"v_add_f32_dpp v{T + i}, v{T + i}, v{T + i} row_ror:{ro} row_mask:0xf bank_mask:0xf")
        C = CA if j % 2 == 0 else CB
        for i in range(4):
            A(f"v_add_f32_dpp v{C}, v{T + i}, v{T + i} row_ror:1 row_mask:0xf bank_mask:0x{1 << i:x}")
        if j % 2 == 1:
            off = ((j % 8) // 2) * 512
            A(f"""
            v_cvt_pk_bf16_f32 v{TM}, v{CA}, v{CB}
            v_lshlrev_b32 v{TM + 1}, 16, v{TM}
            v_and_b32 v{TM + 2}, s{sMASK}, v{TM}
            v_mul_f32 v{TM + 1}, s{sSCALE}, v{TM + 1}
            v_mul_f32 v{TM + 2}, s{sSCALE}, v{TM + 2}
            v_cvt_pk_bf16_f32 v{TM}, v{TM + 1}, v{TM + 2}
            v_lshlrev_b32 v{TM + 1}, 16, v{TM}
            v_and_b32 v{TM + 2}, s{sMASK}, v{TM}
            ds_write_b32 v4, v{TM + 1} offset:{off}
            ds_write_b32 v4, v{TM + 2} offset:{off + 16}
            v_max3_f32 v{MX}, v{MX}, v{TM + 1}, v{TM + 2}
            """)
            if j % 8 == 7:
                A("v_add_u32 v4, 2048, v4")

    def pread(chunk):
        pb = PB[chunk % 2]
        off = (chunk % 4) * 512
        A(f"ds_read_b128 v[{pb}:{pb + 3}], v3 offset:{off}")
        A(f"ds_read_b128 v[{pb + 4}:{pb + 7}], v3 offset:{off + 16}")

    def vcompute(j):
        r = RING + 16 * (j % 8)
        pb = PB[(j // 2) % 2] + 4 * (j % 2)
        for i in range(4):
            A(f"v_lshrrev_b32 v{PLO + (i & 1)}, 16, v{pb + i}")
            for q in range(4):
                A(f"v_dot2c_f32_bf16 v{ACC + 2 * q + 1}, v{r + 4 * i + q}, v{pb + i}")
            for q in range(4):
                A(f"v_dot2c_f32_bf16 v{ACC + 2 * q}, v{r + 4 * i + q}, v{PLO + (i & 1)}")

    A(f"s_lshl_b32 s{sKOFF}, s{sWAVE}, 13")
    A(f"s_mov_b32 s{sVOFF}, s{sKOFF}")
    for n in range(12 if deep else 8):
        if n >= fill:
            A(f"s_waitcnt vmcnt({4 * (fill - 1)})")
        issue()
    A(f"""
    s_lshl_b32 s{sT0}, s{sWAVE}, 7
    v_lshlrev_b32 v3, 5, v5
    v_add_u32 v3, s{sT0}, v3
    v_lshrrev_b32 v4, 2, v6
    v_lshlrev_b32 v4, 2, v4
    v_add_u32 v4, v3, v4
    v_lshlrev_b32 v7, 5, v6             ; c*32
    v_mov_b32 v{MX}, 0xff800000
    """)
    A("s_barrier")
    QT = 32
    for w in range(4):
        A(f"ds_read_b128 v[{QT + 8 * w}:{QT + 3 + 8 * w}], v7 offset:{L_QP + 512 * w}")
        A(f"ds_read_b128 v[{QT + 4 + 8 * w}:{QT + 7 + 8 * w}], v7 offset:{L_QP + 512 * w + 16}")
    A("s_waitcnt lgkmcnt(0)")
    for j in range(8):
        A(f"v_add_f32 v{QT + j}, v{QT + j}, v{QT + 8 + j}")
        A(f"v_add_f32 v{QT + 16 + j}, v{QT + 16 + j}, v{QT + 24 + j}")
    for j in range(8):
        A(f"v_add_f32 v{QT + j}, v{QT + j}, v{QT + 16 + j}")
    for j in range(4):
        A(f"v_cvt_pk_bf16_f32 v{Q + j}, v{QT + 2 * j}, v{QT + 1 + 2 * j}")
    for j in range(8):
        A(f"v_mov_b32 v{ACC + j}, 0")

    def kstep(j, target):
        wait_half(j)
        while nxt[0] <= min(target, j + 7):
            issue()
        kcompute(j)

    first = 16 if deep else 8
    for j in range(first):
        if deep and j < 13 - DIST + 3 and j < 12:
            wait_half(j)
            kcompute(j)
            if j < 4:
                issue()
        elif deep:
            wait_half(j)
            while nxt[0] <= j + DIST and nxt[0] - 4 < j:
                issue()
            kcompute(j)
        else:
            kstep(j, j + DIST)
    nloop = 5 if deep else 6
    A(f"s_mov_b32 s{sCNT}, {nloop}")
    A.label("L_kloop")
    q0 = [x - first for x in issued]
    for j in range(first, first + 8):
        kstep(j, j + DIST)
    assert [x - first - 8 for x in issued] == q0, (issued, q0)
    A(f"s_sub_u32 s{sCNT}, s{sCNT}, 1")
    A(f"s_cmp_lg_u32 s{sCNT}, 0")
    A("s_cbranch_scc1 L_kloop")
    shk = 56 - first - 8
    sh = 56 - 16
    issued[:] = [x + shk for x in issued]
    nxt[0] += shk
    for j in range(56, 64):
        kstep(j, j + DIST + 2 * (j - 55))
    issue()
    assert nxt[0] == 72, nxt
    for ro in (4, 8):
        A(f"v_max_f32_dpp v{MX}, v{MX}, v{MX} row_ror:{ro} row_mask:0xf bank_mask:0xf")
    A(f"""
    v_mov_b32 v{TM}, v{MX}
    v_permlane16_swap_b32 v{MX}, v{TM}
    v_max_f32 v{MX}, v{MX}, v{TM}
    v_mov_b32 v{TM}, v{MX}
    v_permlane32_swap_b32 v{MX}, v{TM}
    v_max_f32 v{MX}, v{MX}, v{TM}
    s_lshl_b32 s{sT0}, s{sWAVE}, 2
    v_mov_b32 v{TM}, s{sT0}
    ds_write_b32 v{TM}, v{MX} offset:{L_MISC}
    s_waitcnt lgkmcnt(0)
    """)

    def midphase_common(E, TT):
        A("s_barrier")
        A(f"""
        v_lshlrev_b32 v{TT}, 5, v0
        v_mov_b32 v{TT + 1}, 0
        ds_read_b128 v[{E}:{E + 3}], v{TT} offset:{L_SC}
        ds_read_b128 v[{E + 4}:{E + 7}], v{TT} offset:{L_SC + 16}
        ds_read_b128 v[{TT + 4}:{TT + 7}], v{TT + 1} offset:{L_MISC}
        s_waitcnt lgkmcnt(0)
        v_max_f32 v{TT + 4}, v{TT + 4}, v{TT + 5}
        v_max3_f32 v{TT + 4}, v{TT + 4}, v{TT + 6}, v{TT + 7}     ; m_loc
        """)
        for j in range(8):
            A(f"v_sub_f32 v{E + j}, v{E + j}, v{TT + 4}")
        for j in range(8):
            A(f"v_mul_f32 v{E + j}, s{sLOG2E}, v{E + j}")
        for j in range(8):
            A(f"v_exp_f32 v{E + j}, v{E + j}")
        A(f"v_add_f32 v{TT + 2}, v{E}, v{E + 1}")
        for j in range(2, 8):
            A(f"v_add_f32 v{TT + 2}, v{TT + 2}, v{E + j}")
        wave_allreduce("v_add_f32", TT + 2, TT + 3)
        A(f"""
        s_lshl_b32 s{sT0}, s{sWAVE}, 2
        v_mov_b32 v{TT + 3}, s{sT0}
        ds_write_b32 v{TT + 3}, v{TT + 2} offset:{L_MISC + 32}
        s_waitcnt lgkmcnt(0)
        s_barrier
        """)

    def midphase_end(E, TT):
        A("s_barrier")
        A(f"""
        ds_read_b32 v{TT + 2}, v{TT + 1} offset:{L_MISC + 64}
        s_waitcnt lgkmcnt(0)
        """)
        for j in range(8):
            A(f"v_mul_f32 v{E + j}, v{E + j}, v{TT + 2}")
        for j in range(0, 8, 2):
            A(f"v_cvt_pk_bf16_f32 v{TT + 3}, v{E + j}, v{E + j + 1}")
            A(f"v_lshlrev_b32 v{E + j}, 16, v{TT + 3}")
            A(f"v_and_b32 v{E + j + 1}, s{sMASK}, v{TT + 3}")
        A(f"""
        ds_write_b128 v{TT}, v[{E}:{E + 3}] offset:{L_SC}
        ds_write_b128 v{TT}, v[{E + 4}:{E + 7}] offset:{L_SC + 16}
        s_waitcnt lgkmcnt(0)
        s_barrier
        """)

    midphase_common(64, 72)
    midphase_end(64, 72)

    pread(0)

    def vstep(jv, target):
        j = NH + jv
        if jv % 2 == 0:
            A("s_waitcnt lgkmcnt(0)")
        else:
            if jv % 8 == 7:
                A("v_add_u32 v3, 2048, v3")
            pread(jv // 2 + 1)
        wait_half(j)
        while nxt[0] <= min(target, j + 7, 2 * NH - 1):
            issue()
        vcompute(jv)

    for jv in range(8):
        vstep(jv, NH + jv + DIST)
    A(f"s_mov_b32 s{sCNT}, 6")
    A.label("L_vloop")
    q0 = [x - 8 for x in issued]
    for jv in range(8, 16):
        vstep(jv, NH + jv + DIST)
    assert [x - 16 for x in issued] == q0
    A(f"s_sub_u32 s{sCNT}, s{sCNT}, 1")
    A(f"s_cmp_lg_u32 s{sCNT}, 0")
    A("s_cbranch_scc1 L_vloop")
    issued[:] = [x + sh for x in issued]
    nxt[0] += sh
    for jv in range(56, 64):
        vstep(jv, NH + jv + DIST)
    assert not issued
    reduce8(ACC)
    A(f"""
    v_lshl_add_u32 v{TM}, v5, 2, v7        ; (8c+g)*4
    ds_add_f32 v{TM}, v{ACC} offset:{L_ACC}
    ds_add_f32 v{TM}, v{ACC + 4} offset:{L_ACC + 16}
    s_waitcnt lgkmcnt(0)
    s_barrier
    s_endpgm
    """)

    A.label("L_helper")
    W = 128
    if prio:
        A("s_setprio 3")
    stamp(2)
    A(f"""
    s_sub_u32 s{sHW}, s{sWAVE}, 4
    s_lshl_b32 s{sT0}, s{sB}, 10
    v_add_u32 v7, s{sT0}, v2
    global_load_dwordx4 v[8:11], v7, s[{sX}:{sX + 1}]
    s_lshl_b32 s{sT0}, s{sH}, 8
    s_add_u32 s{SRD_T}, s{sWQ}, s{sT0}
    s_addc_u32 s{SRD_T + 1}, s{sWQ + 1}, 0
    s_sub_u32 s{SRD_T + 2}, 0x400000, s{sT0}
    s_lshl_b32 s{sT1}, s{sHW}, 20          ; 128*w' rows * 8192
    v_lshlrev_b32 v7, 18, v5               ; 32*g*8192
    v_lshl_add_u32 v7, v6, 4, v7
    """)
    for i in range(32):
        A(f"buffer_load_dwordx4 v[{W + 4 * i}:{W + 4 * i + 3}], v7, s[{SRD_T}:{SRD_T + 3}], s{sT1} offen {qnt}")
        if i < 31:
            A(f"s_add_u32 s{sT1}, s{sT1}, 8192")
    A(f"""
    v_mov_b32 v12, 0
    v_mov_b32 v13, 0
    v_mov_b32 v14, 0
    v_mov_b32 v15, 0
    s_lshl_b32 s{sT0}, s{sHW}, 10
    v_add_u32 v16, s{sT0}, v2
    ds_write_b128 v16, v[12:15] offset:{L_ACC}
    """)
    stamp(2)
    A("s_waitcnt vmcnt(32)")
    stamp(2)
    layernorm(8, 16, 24)
    stamp(2)
    A(f"""
    v_lshlrev_b32 v7, 5, v1
    ds_write_b128 v7, v[16:19] offset:{L_XN}
    ds_write_b128 v7, v[20:23] offset:{L_XN + 16}
    s_lshl_b32 s{sT0}, s{sHW}, 9
    v_lshlrev_b32 v7, 7, v5
    v_add_u32 v7, s{sT0}, v7               ; (128w'+32g)*4
    s_waitcnt lgkmcnt(0)
    """)
    for n in range(8):
        A(f"ds_read_b128 v[{64 + 4 * n}:{67 + 4 * n}], v7 offset:{L_XN + 16 * n}")
    for j in range(8):
        A(f"v_mov_b32 v{32 + j}, 0")
    A("s_waitcnt lgkmcnt(0)")
    for i in range(32):
        if i % 4 == 0:
            A(f"s_waitcnt vmcnt({28 - i})")
            if i % 8 == 0 or i == 28:
                stamp(2)
        A(f"v_lshrrev_b32 v{30 + (i & 1)}, 16, v{64 + i}")
        for q in range(4):
            A(f"v_dot2c_f32_bf16 v{32 + 2 * q + 1}, v{W + 4 * i + q}, v{64 + i}")
        for q in range(4):
            A(f"v_dot2c_f32_bf16 v{32 + 2 * q}, v{W + 4 * i + q}, v{30 + (i & 1)}")
    reduce8(32)
    A(f"""
    v_lshlrev_b32 v7, 5, v6
    v_lshl_add_u32 v7, v5, 2, v7
    s_lshl_b32 s{sT0}, s{sHW}, 9
    v_add_u32 v7, s{sT0}, v7
    ds_write_b32 v7, v32 offset:{L_QP}
    ds_write_b32 v7, v36 offset:{L_QP + 16}
    s_waitcnt lgkmcnt(0)
    s_barrier
    """)
    stamp(0)
    A(f"""
    s_mov_b32 s{sTAIL}, s{sR}
    s_cmp_eq_u32 s{sXC}, 0
    s_cselect_b32 s{sTAIL}, s{sTAIL}, -1
    s_cmp_lg_u32 s{sHW}, 0
    s_cbranch_scc1 L_noclear
    v_mov_b32 v8, -1
    v_mov_b32 v9, -1
    v_mov_b32 v10, -1
    v_mov_b32 v11, -1
    s_lshl_b32 s{sT0}, s{sLIST}, 10
    s_add_u32 s{sT0}, s{sT0}, {W_Y}
    buffer_store_dwordx4 v[8:11], v2, s[{SRD_WS}:{SRD_WS + 3}], s{sT0} offen sc1
    s_mov_b32 exec_lo, -1
    s_mov_b32 exec_hi, 0
    s_lshl_b32 s{sT0}, s2, 12
    s_add_u32 s{sT0}, s{sT0}, {W_O}
    buffer_store_dwordx4 v[8:11], v2, s[{SRD_WS}:{SRD_WS + 3}], s{sT0} offen sc1
    s_mov_b64 exec, 0xff
    s_lshl_b32 s{sT0}, s2, 7
    s_add_u32 s{sT0}, s{sT0}, {W_ML}
    buffer_store_dwordx4 v[8:11], v2, s[{SRD_WS}:{SRD_WS + 3}], s{sT0} offen sc1
    s_cmp_lg_u32 s{sXC}, 0
    s_cbranch_scc1 L_noclear2
    s_lshl_b32 s{sT0}, s{sR}, 7
    s_add_u32 s{sT0}, s{sT0}, {W_H}
    buffer_store_dwordx4 v[8:11], v2, s[{SRD_WS}:{SRD_WS + 3}], s{sT0} offen sc1
    s_mov_b64 exec, -1
    s_lshl_b32 s{sT0}, s{sR}, 13
    s_add_u32 s{sT0}, s{sT0}, {W_PO}
    s_add_u32 s{sT1}, s{sT0}, 4096
    buffer_store_dwordx4 v[8:11], v2, s[{SRD_WS}:{SRD_WS + 3}], s{sT0} offen sc1
    buffer_store_dwordx4 v[8:11], v2, s[{SRD_WS}:{SRD_WS + 3}], s{sT0} offen offset:1024 sc1
    buffer_store_dwordx4 v[8:11], v2, s[{SRD_WS}:{SRD_WS + 3}], s{sT0} offen offset:2048 sc1
    buffer_store_dwordx4 v[8:11], v2, s[{SRD_WS}:{SRD_WS + 3}], s{sT0} offen offset:3072 sc1
    buffer_store_dwordx4 v[8:11], v2, s[{SRD_WS}:{SRD_WS + 3}], s{sT1} offen sc1
    buffer_store_dwordx4 v[8:11], v2, s[{SRD_WS}:{SRD_WS + 3}], s{sT1} offen offset:1024 sc1
    buffer_store_dwordx4 v[8:11], v2, s[{SRD_WS}:{SRD_WS + 3}], s{sT1} offen offset:2048 sc1
    buffer_store_dwordx4 v[8:11], v2, s[{SRD_WS}:{SRD_WS + 3}], s{sT1} offen offset:3072 sc1
    s_mov_b64 exec, 1
    s_getreg_b32 s{sT1}, hwreg(HW_REG_XCC_ID)
    s_and_b32 s{sT1}, s{sT1}, 15
    v_mov_b32 v12, s{sT1}
    s_lshl_b32 s{sT0}, s{sR}, 2
    s_add_u32 s{sT0}, s{sT0}, {W_XID}
    buffer_store_dword v12, v2, s[{SRD_WS}:{SRD_WS + 3}], s{sT0} offen sc1
    L_noclear2:
    s_mov_b64 exec, 1
    v_mov_b32 v12, 1
    v_mov_b32 v13, 0
    s_waitcnt vmcnt(0)
    global_atomic_add v13, v12, s[{sDBG}:{sDBG + 1}]
    s_mov_b64 exec, -1
    L_noclear:
    """)
    A(f"""
    s_lshl_b32 s{sT0}, s{sH}, 17
    s_lshl_b32 s{sT1}, s{sHALF}, 9
    s_add_u32 s{sT0}, s{sT0}, s{sT1}
    s_add_u32 s{SRD_T}, s{sWO}, s{sT0}
    s_addc_u32 s{SRD_T + 1}, s{sWO + 1}, 0
    s_sub_u32 s{SRD_T + 2}, 0x400000, s{sT0}
    v_lshrrev_b32 v8, 5, v1                ; hi
    v_and_b32 v9, 31, v1                   ; c32
    v_lshlrev_b32 v7, 10, v8
    v_lshl_add_u32 v7, v9, 4, v7
    s_lshl_b32 s{sT1}, s{sHW}, 15          ; 32 w' rows * 1024
    """)
    for i in range(16):
        A(f"buffer_load_dwordx4 v[{W + 4 * i}:{W + 4 * i + 3}], v7, s[{SRD_T}:{SRD_T + 3}], s{sT1} offen offset:{2048 * (i & 1)} {qnt}")
        if i & 1 and i < 15:
            A(f"s_add_u32 s{sT1}, s{sT1}, 4096")
    A(f"""
    v_mul_u32_u24 v7, {WO_P}, v8
    v_lshl_add_u32 v7, v9, 4, v7
    s_mul_i32 s{sT0}, s{sHW}, {32 * WO_P}
    s_add_u32 s{sT0}, s{sT0}, {L_WO}
    v_add_u32 v7, s{sT0}, v7
    """)
    for i in range(16):
        A(f"s_waitcnt vmcnt({15 - i})")
        A(f"ds_write_b128 v7, v[{W + 4 * i}:{W + 4 * i + 3}] offset:{2 * WO_P * i}")
    F1 = 128
    F2 = 64
    XR = 63
    A(f"""
    s_cmp_lg_u32 s{sXC}, 0
    s_cbranch_scc1 L_noffn
    s_lshl_b32 s{sT0}, s{sR}, 7
    v_and_b32 v8, 31, v1
    v_lshl_add_u32 v8, v8, 2, s{sT0}
    global_load_dword v{XR}, v8, s[{sX}:{sX + 1}]
    s_cmp_ge_u32 s{sR}, 28
    s_cbranch_scc1 L_noffn1
    s_waitcnt lgkmcnt(0)
    s_mov_b32 s{SRD_T}, s{sWD}
    s_mov_b32 s{SRD_T + 1}, s{sWD + 1}
    s_mov_b32 s{SRD_T + 2}, {1792 * 1024}
    v_lshlrev_b32 v7, 10, v5
    v_lshl_add_u32 v7, v6, 4, v7           ; g*1024 + c*16
    s_lshl_b32 s{sT0}, s{sR}, 16
    s_lshl_b32 s{sT1}, s{sHW}, 8
    s_add_u32 s{sT1}, s{sT1}, s{sT0}
    """)
    for i in range(16):
        A(f"buffer_load_dwordx4 v[{F2 + 4 * i}:{F2 + 4 * i + 3}], v7, s[{SRD_T}:{SRD_T + 3}], s{sT1} offen {WNT}")
        A(f"s_add_u32 s{sT1}, s{sT1}, 4096")
    A(f"""
    v_lshrrev_b32 v8, 3, v1
    v_and_b32 v9, 7, v1
    v_mul_u32_u24 v7, 3584, v8
    v_lshl_add_u32 v7, v9, 4, v7
    s_mov_b32 s{SRD_T + 2}, {512 * 3584}
    """)
    for m, sp in enumerate((sWG, sWU)):
        A(f"""
        s_mov_b32 s{SRD_T}, s{sp}
        s_mov_b32 s{SRD_T + 1}, s{sp + 1}
        s_mul_i32 s{sT1}, s{sHW}, {128 * 3584}
        s_lshl_b32 s{sT0}, s{sR}, 7
        s_add_u32 s{sT1}, s{sT1}, s{sT0}
        """)
        for i in range(16):
            r = F1 + 64 * m + 4 * i
            A(f"buffer_load_dwordx4 v[{r}:{r + 3}], v7, s[{SRD_T}:{SRD_T + 3}], s{sT1} offen {WNT}")
            A(f"s_add_u32 s{sT1}, s{sT1}, {8 * 3584}")
    A(f"""
    s_mul_i32 s{sT0}, s{sHW}, {STG_SZ}
    s_add_u32 s{sT0}, s{sT0}, {L_STG}
    v_mul_u32_u24 v10, 288, v5
    v_lshl_add_u32 v10, v6, 4, v10
    v_add_u32 v10, s{sT0}, v10             ; wd staging write: g*288 + c*16
    v_mul_u32_u24 v11, 160, v8
    v_lshl_add_u32 v11, v9, 4, v11
    v_add_u32 v11, s{sT0}, v11             ; g/u staging write: (l>>3)*160 + (l&7)*16
    v_lshrrev_b32 v12, 2, v6
    v_lshl_add_u32 v12, v5, 2, v12         ; row = 4g + (c>>2)
    v_and_b32 v13, 3, v6
    v_lshlrev_b32 v13, 3, v13
    v_add_u32 v13, s{sT0}, v13
    v_mad_u32_u24 v14, v12, 288, v13       ; invalid literal? replaced below
    """.replace("v_mad_u32_u24 v14, v12, 288, v13       ; invalid literal? replaced below",
                "v_mul_u32_u24 v14, 288, v12\nv_add_u32 v14, v14, v13\nv_mul_u32_u24 v15, 160, v12\nv_add_u32 v15, v15, v13"))
    for ks in range(2):
        A(f"s_waitcnt vmcnt({32 + 8 - 8 * ks})")
        for i in range(8):
            r = F2 + 32 * ks + 4 * i
            A(f"ds_write_b128 v10, v[{r}:{r + 3}] offset:{4 * 288 * i}")
        for nt in range(8):
            r = F2 + 32 * ks + 4 * nt
            A(f"ds_read_b64_tr_b16 v[{r}:{r + 1}], v14 offset:{32 * nt}")
            A(f"ds_read_b64_tr_b16 v[{r + 2}:{r + 3}], v14 offset:{16 * 288 + 32 * nt}")
    for ms in range(8):
        A(f"s_waitcnt vmcnt({28 - 4 * ms})")
        for i in range(4):
            r = F1 + 16 * ms + 4 * i
            A(f"ds_write_b128 v11, v[{r}:{r + 3}] offset:{8 * 160 * i}")
        for nt in range(4):
            r = F1 + 16 * ms + 4 * nt
            A(f"ds_read_b64_tr_b16 v[{r}:{r + 1}], v15 offset:{32 * nt}")
            A(f"ds_read_b64_tr_b16 v[{r + 2}:{r + 3}], v15 offset:{16 * 160 + 32 * nt}")
    A(f"""
    L_noffn1:
    s_waitcnt vmcnt(0)
    L_noffn:
    s_waitcnt lgkmcnt(0)
    """)
    stamp()
    midphase_common(8, 16)
    stamp()
    A(f"""
    s_cmp_lg_u32 s{sHW}, 0
    s_cbranch_scc1 L_noex
    ds_read_b128 v[24:27], v17 offset:{L_MISC + 32}
    ds_read_b128 v[28:31], v17 offset:{L_MISC + 48}
    s_waitcnt lgkmcnt(0)
    v_add_f32 v24, v24, v25
    v_add_f32 v26, v26, v27
    v_add_f32 v28, v28, v29
    v_add_f32 v30, v30, v31
    v_add_f32 v24, v24, v26
    v_add_f32 v28, v28, v30
    v_add_f32 v21, v24, v28
    s_mov_b64 exec, 1
    s_lshl_b32 s{sT0}, s2, 7
    s_add_u32 s{sT0}, s{sT0}, {W_ML}
    buffer_store_dwordx2 v[20:21], v17, s[{SRD_WS}:{SRD_WS + 3}], s{sT0} offen sc1
    s_mov_b64 exec, -1
    s_mov_b32 s{sSPIN}, 0
    L_arr:
    global_load_dword v24, v17, s[{sDBG}:{sDBG + 1}] sc1
    s_waitcnt vmcnt(0)
    v_readfirstlane_b32 s{sT0}, v24
    s_add_u32 s{sSPIN}, s{sSPIN}, 1
    s_cmp_gt_u32 s{sSPIN}, {SPIN}
    s_cbranch_scc1 L_arr_x
    s_cmp_lt_u32 s{sT0}, 256
    s_cbranch_scc1 L_arr
    L_arr_x:
    s_xor_b32 s{sT1}, s2, 8
    s_lshl_b32 s{sT1}, s{sT1}, 7
    s_add_u32 s{sT1}, s{sT1}, {W_ML}
    """)
    poll([f"buffer_load_dwordx2 v[24:25], v17, s[{SRD_WS}:{SRD_WS + 3}], s{sT1} offen sc1"], [24, 25], "ml")
    A(f"""
    v_max_f32 v26, v20, v24            ; m
    v_sub_f32 v27, v20, v26
    v_sub_f32 v28, v24, v26
    v_mul_f32 v27, s{sLOG2E}, v27
    v_mul_f32 v28, s{sLOG2E}, v28
    v_exp_f32 v27, v27
    v_exp_f32 v28, v28
    v_mul_f32 v29, v21, v27
    v_mul_f32 v30, v25, v28
    v_add_f32 v29, v29, v30            ; l
    v_rcp_f32 v30, v29
    v_mul_f32 v31, v27, v30
    v_fma_f32 v24, -v31, v29, v27
    v_fma_f32 v31, v24, v30, v31       ; c = f/l
    ds_write_b32 v17, v31 offset:{L_MISC + 64}
    s_waitcnt lgkmcnt(0)
    L_noex:
    """)
    stamp()
    midphase_end(8, 16)
    if local:
        A(f"""
        s_mov_b32 s{sLOCAL}, 0
        s_cmp_lg_u32 s{sXC}, 0
        s_cbranch_scc1 L_noloc
        v_and_b32 v8, 31, v1
        v_lshlrev_b32 v8, 2, v8
        s_mov_b32 s{sT0}, {W_XID}
        buffer_load_dword v9, v8, s[{SRD_WS}:{SRD_WS + 3}], s{sT0} offen sc1
        s_waitcnt vmcnt(0)
        v_readfirstlane_b32 s{sT1}, v9
        v_cmp_ne_u32 vcc, s{sT1}, v9
        s_cmp_eq_u64 vcc, 0
        s_cselect_b32 s{sLOCAL}, 1, 0
        L_noloc:
        """)
    A(f"""
    v_lshrrev_b32 v8, 2, v6                ; i>>2
    v_lshl_add_u32 v8, v5, 2, v8           ; row = 4g + (i>>2)
    v_mul_u32_u24 v8, {WO_P}, v8
    v_and_b32 v9, 3, v6
    v_lshl_add_u32 v8, v9, 3, v8
    s_lshl_b32 s{sT0}, s{sHW}, 7
    s_add_u32 s{sT0}, s{sT0}, {L_WO}
    v_add_u32 v40, s{sT0}, v8
    s_barrier
    """)
    stamp()
    A(f"""
    s_cmp_lg_u32 s{sHW}, 0
    s_cbranch_scc1 L_nopub
    ds_read_b128 v[8:11], v2 offset:{L_ACC}
    s_mov_b32 exec_lo, -1
    s_mov_b32 exec_hi, 0
    s_lshl_b32 s{sT0}, s2, 12
    s_add_u32 s{sT0}, s{sT0}, {W_O}
    s_waitcnt lgkmcnt(0)
    buffer_store_dwordx4 v[8:11], v2, s[{SRD_WS}:{SRD_WS + 3}], s{sT0} offen sc1
    s_mov_b64 exec, -1
    L_nopub:
    v_and_b32 v12, 31, v1
    v_lshlrev_b32 v12, 4, v12
    ds_read_b128 v[16:19], v12 offset:{L_ACC}
    s_xor_b32 s{sT1}, s2, 8
    s_lshl_b32 s{sT1}, s{sT1}, 12
    s_add_u32 s{sT1}, s{sT1}, {W_O}
    """)
    poll([f"buffer_load_dwordx4 v[8:11], v12, s[{SRD_WS}:{SRD_WS + 3}], s{sT1} offen sc1"], [8, 9, 10, 11], "o")
    A(f"""
    s_waitcnt lgkmcnt(0)
    v_add_f32 v8, v8, v16
    v_add_f32 v9, v9, v17
    v_add_f32 v10, v10, v18
    v_add_f32 v11, v11, v19
    v_cvt_pk_bf16_f32 v8, v8, v9
    v_cvt_pk_bf16_f32 v9, v10, v11
    v_lshrrev_b32 v12, 1, v12              ; q*8
    s_lshl_b32 s{sT0}, s{sHW}, 8
    v_add_u32 v12, s{sT0}, v12
    ds_write_b64 v12, v[8:9] offset:{L_OB}
    v_lshlrev_b32 v13, 3, v5
    v_add_u32 v13, s{sT0}, v13             ; OB + w'*256 + g*8
    s_waitcnt lgkmcnt(0)
    """)
    stamp()
    for s in range(4):
        A(f"ds_read_b64 v[{16 + 4 * s}:{17 + 4 * s}], v13 offset:{L_OB + 64 * s}")
        A(f"ds_read_b64 v[{18 + 4 * s}:{19 + 4 * s}], v13 offset:{L_OB + 64 * s + 32}")
    BF = (44, 48, 52, 32)
    D = 8
    for nt in range(4):
        for s in range(4):
            b = BF[s]
            A(f"ds_read_b64_tr_b16 v[{b}:{b + 1}], v40 offset:{32 * s * WO_P + 32 * nt}")
            A(f"ds_read_b64_tr_b16 v[{b + 2}:{b + 3}], v40 offset:{(32 * s + 16) * WO_P + 32 * nt}")
        for s in range(4):
            b = BF[s]
            A(f"s_waitcnt lgkmcnt({6 - 2 * s})")
            A(f"v_mfma_f32_16x16x32_bf16 v[8:11], v[{16 + 4 * s}:{19 + 4 * s}], v[{b}:{b + 3}], {'0' if s == 0 else 'v[8:11]'}")
        A(f"v_mov_b32_dpp v36, v8 quad_perm:[0,1,2,3] row_mask:0x{1 << nt:x} bank_mask:0xf")
    A(f"""
    s_lshl_b32 s{sT0}, s{sLIST}, 10
    s_lshl_b32 s{sT1}, s{sHW}, 8
    s_add_u32 s{sT0}, s{sT0}, s{sT1}
    s_add_u32 s{sT0}, s{sT0}, {W_Y}
    v_lshlrev_b32 v12, 2, v1
    buffer_store_dword v36, v12, s[{SRD_WS}:{SRD_WS + 3}], s{sT0} offen sc1
    """)
    stamp()
    A(f"""
    s_cmp_lg_u32 s{sXC}, 0
    s_cbranch_scc1 L_fin
    """)
    A(f"""
    s_lshr_b32 s{sT0}, s{sR}, 3
    s_lshl_b32 s{sT0}, s{sT0}, 16          ; b*32*2048
    s_and_b32 s{sT1}, s{sR}, 7
    s_lshl_b32 s{sT1}, s{sT1}, 8
    s_add_u32 s{sT0}, s{sT0}, s{sT1}
    s_lshl_b32 s{sT1}, s{sHW}, 14          ; 8 w' * 2048
    s_add_u32 s{sT0}, s{sT0}, s{sT1}
    s_add_u32 s{sT0}, s{sT0}, {W_Y}
    s_add_u32 s{sT1}, s{sT0}, 8192
    v_lshlrev_b32 v12, 11, v5
    v_lshl_add_u32 v12, v6, 4, v12
    """)
    poll([f"buffer_load_dwordx4 v[16:19], v12, s[{SRD_WS}:{SRD_WS + 3}], s{sT0} offen sc1",
          f"buffer_load_dwordx4 v[20:23], v12, s[{SRD_WS}:{SRD_WS + 3}], s{sT1} offen sc1"], list(range(16, 24)), "y")
    stamp()
    A(f"""
    v_add_f32 v16, v16, v20
    v_add_f32 v17, v17, v21
    v_add_f32 v18, v18, v22
    v_add_f32 v19, v19, v23
    v_permlane16_swap_b32 v16, v17
    v_permlane16_swap_b32 v18, v19
    v_add_f32 v16, v16, v17
    v_add_f32 v18, v18, v19
    v_permlane32_swap_b32 v16, v18
    v_add_f32 v16, v16, v18
    v_lshlrev_b32 v12, 4, v6
    v_lshl_add_u32 v12, v5, 2, v12
    s_lshl_b32 s{sT0}, s{sHW}, 8
    v_add_u32 v12, s{sT0}, v12
    ds_write_b32 v12, v16 offset:{L_RED}
    v_and_b32 v12, 31, v1
    v_lshlrev_b32 v13, 3, v12
    s_waitcnt lgkmcnt(0)
    s_barrier
    s_cmp_lg_u32 s{sHW}, 0
    s_cbranch_scc1 L_not2
    ds_read_b64 v[16:17], v13 offset:{L_RED}
    ds_read_b64 v[18:19], v13 offset:{L_RED + 256}
    ds_read_b64 v[20:21], v13 offset:{L_RED + 512}
    ds_read_b64 v[22:23], v13 offset:{L_RED + 768}
    v_lshlrev_b32 v24, 16, v{XR}
    v_and_b32 v25, s{sMASK}, v{XR}
    s_waitcnt lgkmcnt(0)
    v_add_f32 v16, v16, v18
    v_add_f32 v17, v17, v19
    v_add_f32 v20, v20, v22
    v_add_f32 v21, v21, v23
    v_add_f32 v16, v16, v20
    v_add_f32 v17, v17, v21
    v_cvt_pk_bf16_f32 v16, v16, v17
    v_lshlrev_b32 v17, 16, v16
    v_and_b32 v18, s{sMASK}, v16
    v_add_f32 v17, v17, v24
    v_add_f32 v18, v18, v25
    v_cvt_pk_bf16_f32 v16, v17, v18
    v_lshlrev_b32 v12, 2, v12
    s_lshl_b32 s{sT0}, s{sR}, 7
    s_add_u32 s{sT0}, s{sT0}, {W_H}
    s_mov_b32 exec_lo, -1
    s_mov_b32 exec_hi, 0
    """)

    def pub_store(ins):
        if local:
            lab[0] += 1
            A(f"""
            s_cmp_eq_u32 s{sLOCAL}, 1
            s_cbranch_scc1 L_ls{lab[0]}
            {chr(10).join(i + ' sc1' for i in ins)}
            s_branch L_le{lab[0]}
            L_ls{lab[0]}:
            {chr(10).join(ins)}
            L_le{lab[0]}:
            """)
        else:
            for i in ins:
                A(i + " sc1")

    pub_store([f"buffer_store_dword v16, v12, s[{SRD_WS}:{SRD_WS + 3}], s{sT0} offen"])
    A(f"""
    s_mov_b64 exec, -1
    L_not2:
    s_lshl_b32 s{sT0}, s{sHW}, 10
    s_add_u32 s{sT0}, s{sT0}, {W_H}
    """)
    poll([f"buffer_load_dwordx4 v[8:11], v2, s[{SRD_WS}:{SRD_WS + 3}], s{sT0} offen sc1"], [8, 9, 10, 11], "h")
    stamp()
    A(f"""
    s_lshl_b32 s{sT0}, s{sHW}, 10
    v_add_u32 v12, s{sT0}, v2
    ds_write_b128 v12, v[8:11] offset:{L_HR}
    """)
    layernorm(8, 16, 24)
    A(f"""
    s_cmp_ge_u32 s{sR}, 28
    s_cbranch_scc1 L_t4
    s_mul_i32 s{sT0}, s{sHW}, {HN_P}
    v_add_u32 v12, s{sT0}, v2
    ds_write_b128 v12, v[8:11] offset:{L_HN}
    v_and_b32 v13, 3, v6
    v_mul_u32_u24 v57, {HHL_P}, v13
    v_lshl_add_u32 v57, v5, 3, v57
    v_add_u32 v57, {L_HHL}, v57
    v_mul_u32_u24 v13, {HN_P}, v13
    v_lshl_add_u32 v13, v5, 3, v13
    s_lshl_b32 s{sT0}, s{sHW}, 8
    s_add_u32 s{sT0}, s{sT0}, {L_HN}
    v_add_u32 v56, s{sT0}, v13
    s_waitcnt lgkmcnt(0)
    s_barrier
    """)
    AF, AC = 8, 24
    for s4 in range(4):
        A(f"ds_read2_b64 v[{AF + 4 * s4}:{AF + 4 * s4 + 3}], v56 offset0:{8 * s4} offset1:{8 * s4 + 4}")
    for s4 in range(4):
        A(f"s_waitcnt lgkmcnt({3 - s4})")
        for m in range(2):
            for nt in range(4):
                d = AC + 16 * m + 4 * nt
                f = F1 + 16 * (4 * m + s4) + 4 * nt
                A(f"v_mfma_f32_16x16x32_bf16 v[{d}:{d + 3}], v[{AF + 4 * s4}:{AF + 4 * s4 + 3}], v[{f}:{f + 3}], {'0' if s4 == 0 else f'v[{d}:{d + 3}]'}")
    A(f"""
    s_lshl_b32 s{sT0}, s{sHW}, 11
    v_lshlrev_b32 v12, 4, v6
    v_add_u32 v12, s{sT0}, v12
    s_mov_b64 exec, 0xffff
    """)
    for T_ in range(8):
        A(f"ds_write_b128 v12, v[{AC + 4 * T_}:{AC + 4 * T_ + 3}] offset:{L_RED1 + 256 * T_}")
    A(f"""
    s_mov_b64 exec, -1
    s_lshl_b32 s{sT0}, s{sHW}, 2
    v_add_u32 v12, s{sT0}, v2              ; f*16 + b*4
    s_mul_i32 s{sT1}, s{sHW}, {HHL_P}
    v_lshlrev_b32 v13, 1, v1
    v_add_u32 v13, s{sT1}, v13
    s_waitcnt lgkmcnt(0)
    s_barrier
    """)
    for w in range(4):
        A(f"ds_read_b32 v{16 + w}, v12 offset:{L_RED1 + 2048 * w}")
        A(f"ds_read_b32 v{20 + w}, v12 offset:{L_RED1 + 2048 * w + 1024}")
    A(f"""
    s_waitcnt lgkmcnt(0)
    v_add_f32 v16, v16, v17
    v_add_f32 v18, v18, v19
    v_add_f32 v20, v20, v21
    v_add_f32 v22, v22, v23
    v_add_f32 v16, v16, v18
    v_add_f32 v20, v20, v22
    v_cvt_pk_bf16_f32 v16, v16, v20
    v_lshlrev_b32 v17, 16, v16             ; g
    v_and_b32 v18, s{sMASK}, v16           ; u
    v_mul_f32 v17, 0xbfb8aa3b, v17
    v_exp_f32 v17, v17
    v_add_f32 v17, 1.0, v17
    v_rcp_f32 v19, v17
    v_fma_f32 v17, -v17, v19, 1.0
    v_fma_f32 v17, v17, v19, v19
    v_cvt_pk_bf16_f32 v17, v17, v17
    v_lshlrev_b32 v17, 16, v17
    v_mul_f32 v17, v17, v18
    v_cvt_pk_bf16_f32 v17, v17, v17
    ds_write_b16 v13, v17 offset:{L_HHL}
    s_waitcnt lgkmcnt(0)
    s_barrier
    ds_read2_b64 v[8:11], v57 offset0:0 offset1:4
    ds_read2_b64 v[12:15], v57 offset0:8 offset1:12
    """)
    for ks in range(2):
        A(f"s_waitcnt lgkmcnt({1 - ks})")
        for nt in range(8):
            d = AC + 4 * nt
            f = F2 + 32 * ks + 4 * nt
            A(f"v_mfma_f32_16x16x32_bf16 v[{d}:{d + 3}], v[{8 + 4 * ks}:{11 + 4 * ks}], v[{f}:{f + 3}], {'0' if ks == 0 else f'v[{d}:{d + 3}]'}")
    A(f"""
    s_lshl_b32 s{sT0}, s{sR}, 13
    s_lshl_b32 s{sT1}, s{sHW}, 11
    s_add_u32 s{sT0}, s{sT0}, s{sT1}
    s_add_u32 s{sT0}, s{sT0}, {W_PO}
    v_lshlrev_b32 v12, 4, v6
    s_mov_b64 exec, 0xffff
    """)
    pub_store([f"buffer_store_dwordx4 v[{AC + 4 * nt}:{AC + 4 * nt + 3}], v12, s[{SRD_WS}:{SRD_WS + 3}], s{sT0} offen offset:{256 * nt}" for nt in range(8)])
    A("s_mov_b64 exec, -1")
    A.label("L_t4")
    stamp()
    A(f"""
    s_lshl_b32 s{sT0}, s{sHW}, 16
    s_lshl_b32 s{sT1}, s{sR}, 8
    s_add_u32 s{sT0}, s{sT0}, s{sT1}
    s_add_u32 s{sT0}, s{sT0}, {W_PO}
    s_add_u32 s{sT1}, s{sT0}, 32768
    s_cmp_eq_u32 s{sHW}, 3
    s_cselect_b32 s{sT1}, s{sT0}, s{sT1}
    s_cselect_b32 s{sCNT}, 0, 1.0
    v_lshlrev_b32 v12, 13, v5
    v_lshl_add_u32 v12, v6, 4, v12
    """)
    poll([f"buffer_load_dwordx4 v[16:19], v12, s[{SRD_WS}:{SRD_WS + 3}], s{sT0} offen sc1",
          f"buffer_load_dwordx4 v[20:23], v12, s[{SRD_WS}:{SRD_WS + 3}], s{sT1} offen sc1"], list(range(16, 24)), "po")
    stamp()
    A(f"""
    v_fma_f32 v16, v20, s{sCNT}, v16
    v_fma_f32 v17, v21, s{sCNT}, v17
    v_fma_f32 v18, v22, s{sCNT}, v18
    v_fma_f32 v19, v23, s{sCNT}, v19
    v_permlane16_swap_b32 v16, v17
    v_permlane16_swap_b32 v18, v19
    v_add_f32 v16, v16, v17
    v_add_f32 v18, v18, v19
    v_permlane32_swap_b32 v16, v18
    v_add_f32 v16, v16, v18
    s_lshl_b32 s{sT0}, s{sHW}, 8
    v_lshlrev_b32 v12, 2, v1
    v_add_u32 v13, s{sT0}, v12
    ds_write_b32 v13, v16 offset:{L_RED + 1024}
    v_lshlrev_b32 v13, 10, v5
    v_lshl_add_u32 v13, v6, 1, v13
    s_lshl_b32 s{sT0}, s{sR}, 5
    v_add_u32 v13, s{sT0}, v13             ; b*1024 + (16t+n)*2
    s_waitcnt lgkmcnt(0)
    s_barrier
    s_cmp_lg_u32 s{sHW}, 0
    s_cbranch_scc1 L_fin
    ds_read_b32 v16, v12 offset:{L_RED + 1024}
    ds_read_b32 v17, v12 offset:{L_RED + 1024 + 256}
    ds_read_b32 v18, v12 offset:{L_RED + 1024 + 512}
    ds_read_b32 v19, v12 offset:{L_RED + 1024 + 768}
    ds_read_u16 v20, v13 offset:{L_HR}
    s_waitcnt lgkmcnt(0)
    v_add_f32 v16, v16, v17
    v_add_f32 v18, v18, v19
    v_add_f32 v16, v16, v18
    v_cvt_pk_bf16_f32 v16, v16, v16
    v_lshlrev_b32 v16, 16, v16
    v_lshlrev_b32 v20, 16, v20
    v_add_f32 v16, v16, v20
    v_cvt_pk_bf16_f32 v16, v16, v16
    global_store_short v13, v16, s[{sOUT}:{sOUT + 1}]
    L_fin:
    """)
    if stamps:
        stamp(0)
        A(f"""
        s_cmp_lg_u32 s{sHW}, 0
        s_cbranch_scc1 L_end
        s_waitcnt lgkmcnt(0)
        s_lshl_b32 s{sT0}, s2, 7
        s_add_u32 s{sT0}, s{sT0}, {STAMP_OFF}
        v_mov_b32 v12, s{sT0}
        s_mov_b64 exec, 1
        """)
        A(f"s_getreg_b32 s{sT1}, hwreg(HW_REG_XCC_ID)")
        A(f"v_mov_b32 v8, s{sT1}")
        A(f"global_store_dword v12, v8, s[{sWS}:{sWS + 1}] offset:120")
        A("s_nop 1")
        for i in range(nst[0]):
            A(f"v_mov_b32 v8, s{sST + 2 * i}")
            A(f"v_mov_b32 v9, s{sST + 2 * i + 1}")
            A(f"global_store_dwordx2 v12, v[8:9], s[{sWS}:{sWS + 1}] offset:{8 * i}")
            A("s_nop 1")
    A.label("L_end")
    body, npad = A.render()
    txt = HEAD + f"""; Override launch geometry by editing the next line (default: block=256,
; grid=ceil(out_elems/256), lds=0). Harness parses it; keep it on one line.
; @launch grid=(256,1,1) block=(512,1,1) lds={LDS_BYTES}
.amdgcn_target "amdgcn-amd-amdhsa--gfx950"
.text
.globl {KN}
.p2align 8
.type {KN},@function
{KN}:
{body}
    s_endpgm
.section .rodata,"a"
.p2align 6
.amdhsa_kernel {KN}
  .amdhsa_next_free_vgpr 256
  .amdhsa_next_free_sgpr 102
  .amdhsa_accum_offset 256
  .amdhsa_group_segment_fixed_size 0
  .amdhsa_kernarg_size 96
  .amdhsa_float_denorm_mode_32 3
  .amdhsa_user_sgpr_count 2
  .amdhsa_user_sgpr_kernarg_segment_ptr 1
  .amdhsa_system_sgpr_workgroup_id_x 1
.end_amdhsa_kernel
"""
    return txt, npad, nst[0]


if __name__ == "__main__":
    out = sys.argv[1]
    kv = dict(x.split("=") for x in sys.argv[2:])
    txt, npad, ns = gen(DIST=int(kv.get("dist", 2)), stamps=int(kv.get("stamps", 0)), local=bool(int(kv.get("local", 0))), wnt=kv.get("wnt", "nt"), qnt=kv.get("qnt", ""), fill=int(kv.get("fill", 2)), prio=int(kv.get("prio", 0)), deep=int(kv.get("deep", 0)))
    open(out, "w").write(txt)
    print(out, "pads", npad, "stamps", ns, "bytes", len(txt), "lds", LDS_BYTES)
```

```python
import sys
from asmlib import Asm

KN = "sequential_preLN__mha_block_cached__glu_gated_glu__decode_kernel"
HEAD = open("sequential_preLN__mha_block_cached__glu_gated_glu__decode.s.ref").read().split("; Override launch")[0]

L_SC = 0
L_XN = 16384
L_QP = L_XN + 2048
L_ACC = L_QP + 2048
L_MISC = L_ACC + 4096
L_RED = L_MISC + 256
L_OB = L_RED + 2048
L_HN = L_OB + 1024
HN_P = 1088
L_HR = L_HN + 4 * HN_P
L_WO = L_HR + 4096
WO_P = 544
L_STG = L_WO + 128 * WO_P
STG_SZ = 9216
L_RED1 = L_SC
L_HHL = L_SC + 8192
HHL_P = 144
L_TAB = L_STG + 4 * STG_SZ
L_EXT = L_TAB + 1024
L_END = L_EXT + 4096
LDS_BYTES = (L_END + 255) // 256 * 256

W_ML = 0x000000
W_CNT = 0x010000
W_XID = 0x020000
W_Y = 0x030000
W_H = 0x070000
W_HH = 0x072000
W_O = 0x080000
W_PO = 0x180000
W_P = 0x200000
W_OT = 0x300000
W_TM = 0x028000
WS_SIZE = 0x800000
STAMP_OFF = 512 << 20

SCALE = 0x3DB504F3
LOG2E = 0x3FB8AA3B
EPS = 0x3727C5AC
SPIN = 40000

sX, sK, sV, sWQ, sWO, sWG, sWU, sWD, sOUT, sDBG, sWS = 4, 6, 8, 10, 12, 16, 18, 20, 22, 24, 26
SRD_K, SRD_V, SRD_WS, SRD_T = 28, 32, 36, 40
sWAVE, sXC, sR, sHL, sH, sB, sHALF, sLIST = 44, 45, 46, 47, 48, 49, 50, 51
sT0, sT1, sT2, sT3 = 52, 53, 54, 55
sKOFF, sVOFF, sCNT = 56, 57, 58
sSCALE, sLOG2E, sMASK, sSELLO, sSELHI = 59, 60, 61, 62, 63
sHW = 64
sSPIN = 65
sTAIL = 66
sEX = 68
sST = 72
sLOCAL = 70
sTS = 98


def gen(DIST=2, stamps=False, local=False, wnt='nt', qnt='', fill=2, prio=0, deep=0, prog=0, LEAD=8, b0=0, skip='', rowt=109.0, GMAX=8):
    import struct
    ROWRATE = struct.unpack('<I', struct.pack('<f', 1.0 / rowt))[0]
    WNT = wnt
    A = Asm()
    nst = [0]

    def stamp(kind=1):
        if stamps and (stamps == kind or kind == 0):
            A(f"s_memrealtime s[{sST + 2 * nst[0]}:{sST + 2 * nst[0] + 1}]")
            nst[0] += 1

    def wave_allreduce(op, v, t):
        for r in (8, 4, 2, 1):
            A(f"{op}_dpp v{v}, v{v}, v{v} row_ror:{r} row_mask:0xf bank_mask:0xf")
        A(f"v_mov_b32 v{t}, v{v}")
        A(f"v_permlane16_swap_b32 v{v}, v{t}")
        A(f"{op} v{v}, v{v}, v{t}")
        A(f"v_mov_b32 v{t}, v{v}")
        A(f"v_permlane32_swap_b32 v{v}, v{t}")
        A(f"{op} v{v}, v{v}, v{t}")

    def reduce8(a):
        for j in (0, 2, 4, 6):
            A(f"v_permlane16_swap_b32 v{a + j}, v{a + j + 1}")
        for j in (0, 2, 4, 6):
            A(f"v_add_f32 v{a + j}, v{a + j}, v{a + j + 1}")
        for j in (0, 4):
            A(f"v_permlane32_swap_b32 v{a + j}, v{a + j + 2}")
        for j in (0, 4):
            A(f"v_add_f32 v{a + j}, v{a + j}, v{a + j + 2}")

    def rbf(v):
        A(f"v_cvt_pk_bf16_f32 v{v}, v{v}, v{v}")
        A(f"v_lshlrev_b32 v{v}, 16, v{v}")

    def layernorm(pk, f, t):
        for j in range(4):
            A(f"v_lshlrev_b32 v{f + 2 * j}, 16, v{pk + j}")
            A(f"v_and_b32 v{f + 2 * j + 1}, s{sMASK}, v{pk + j}")
        A(f"v_add_f32 v{t}, v{f}, v{f + 1}")
        for j in range(2, 8):
            A(f"v_add_f32 v{t}, v{t}, v{f + j}")
        wave_allreduce("v_add_f32", t, t + 1)
        A(f"v_mul_f32 v{t}, 0x3b000000, v{t}")
        A(f"v_sub_f32 v{t + 1}, v{f}, v{t}")
        A(f"v_mul_f32 v{t + 2}, v{t + 1}, v{t + 1}")
        for j in range(1, 8):
            A(f"v_sub_f32 v{t + 1}, v{f + j}, v{t}")
            A(f"v_fmac_f32 v{t + 2}, v{t + 1}, v{t + 1}")
        wave_allreduce("v_add_f32", t + 2, t + 1)
        A(f"v_mul_f32 v{t + 2}, 0x3b000000, v{t + 2}")
        rbf(t)
        rbf(t + 2)
        A(f"v_add_f32 v{t + 2}, 0x{EPS:08x}, v{t + 2}")
        rbf(t + 2)
        A(f"v_sqrt_f32 v{t + 2}, v{t + 2}")
        rbf(t + 2)
        A(f"v_rcp_f32 v{t + 3}, v{t + 2}")
        for j in range(0, 8, 2):
            A(f"v_sub_f32 v{f + j}, v{f + j}, v{t}")
            A(f"v_sub_f32 v{f + j + 1}, v{f + j + 1}, v{t}")
            A(f"v_cvt_pk_bf16_f32 v{t + 1}, v{f + j}, v{f + j + 1}")
            A(f"v_lshlrev_b32 v{f + j}, 16, v{t + 1}")
            A(f"v_and_b32 v{f + j + 1}, s{sMASK}, v{t + 1}")
        for j in range(8):
            A(f"v_mul_f32 v{t + 4}, v{f + j}, v{t + 3}")
            A(f"v_fma_f32 v{t + 5}, -v{t + 4}, v{t + 2}, v{f + j}")
            A(f"v_fma_f32 v{f + j}, v{t + 5}, v{t + 3}, v{t + 4}")
        for j in range(0, 8, 2):
            A(f"v_cvt_pk_bf16_f32 v{pk + j // 2}, v{f + j}, v{f + j + 1}")
        for j in range(4):
            A(f"v_lshlrev_b32 v{f + 2 * j}, 16, v{pk + j}")
            A(f"v_and_b32 v{f + 2 * j + 1}, s{sMASK}, v{pk + j}")

    lab = [0]

    def poll(loads, regs, name, sleep=0):
        lab[0] += 1
        L = f"L_poll{lab[0]}_{name}"
        A(f"s_mov_b32 s{sSPIN}, 0")
        A.label(L)
        if sleep:
            A(f"s_sleep {sleep}")
        for l in loads:
            A(l)
        A("s_waitcnt vmcnt(0)")
        A(f"v_cmp_eq_u32 vcc, -1, v{regs[0]}")
        for r in regs[1:]:
            A(f"v_cmp_eq_u32 s[{sT2}:{sT3}], -1, v{r}")
            A(f"s_or_b64 vcc, vcc, s[{sT2}:{sT3}]")
        A(f"s_add_u32 s{sSPIN}, s{sSPIN}, 1")
        A(f"s_cmp_gt_u32 s{sSPIN}, {SPIN}")
        A(f"s_cbranch_scc1 {L}_x")
        A("s_cmp_lg_u64 vcc, 0")
        A(f"s_cbranch_scc1 {L}")
        A.label(L + "_x")

    A(f"""
    s_cmp_ge_u32 s2, 256
    s_cbranch_scc1 L_end
    s_load_dwordx16 s[4:19], s[0:1], 0
    s_load_dwordx8 s[20:27], s[0:1], 64
    v_lshrrev_b32 v3, 6, v0
    v_and_b32 v1, 63, v0
    v_readfirstlane_b32 s{sWAVE}, v3
    v_lshlrev_b32 v2, 4, v1
    s_and_b32 s{sXC}, s2, 7
    s_lshr_b32 s{sR}, s2, 3
    s_lshr_b32 s{sHL}, s{sR}, 3
    s_lshl_b32 s{sH}, s{sHL}, 3
    s_add_u32 s{sH}, s{sH}, s{sXC}
    s_bfe_u32 s{sB}, s{sR}, 0x20001
    s_and_b32 s{sHALF}, s{sR}, 1
    s_lshl_b32 s{sLIST}, s{sB}, 5
    s_add_u32 s{sLIST}, s{sLIST}, s{sH}
    s_lshl_b32 s{sLIST}, s{sLIST}, 1
    s_add_u32 s{sLIST}, s{sLIST}, s{sHALF}
    s_lshl_b32 s{sT0}, s{sLIST}, 20
    s_mov_b32 s{sSCALE}, 0x{SCALE:08x}
    s_mov_b32 s{sLOG2E}, 0x{LOG2E:08x}
    s_mov_b32 s{sMASK}, 0xffff0000
    s_mov_b32 s{sSELLO}, 0x05040100
    s_mov_b32 s{sSELHI}, 0x07060302
    s_mov_b32 s{SRD_K + 2}, 0x100000
    s_mov_b32 s{SRD_K + 3}, 0x20000
    s_mov_b32 s{SRD_V + 2}, 0xf00000
    s_mov_b32 s{SRD_V + 3}, 0x20000
    s_mov_b32 s{SRD_WS + 2}, 0x{WS_SIZE:x}
    s_mov_b32 s{SRD_WS + 3}, 0x20000
    s_mov_b32 s{SRD_T + 3}, 0x20000
    v_bfe_u32 v5, v0, 4, 2          ; g
    v_and_b32 v6, 15, v0            ; c
    """)
    if stamps:
        for i in range(1, 14):
            A(f"s_mov_b64 s[{sST + 2 * i}:{sST + 2 * i + 1}], 0")
    stamp(0)
    A(f"""
    s_waitcnt lgkmcnt(0)
    s_add_u32 s{SRD_K}, s{sK}, s{sT0}
    s_addc_u32 s{SRD_K + 1}, s{sK + 1}, 0
    s_lshl_b32 s{sT1}, s{sXC}, 21
    s_sub_u32 s{sT0}, s{sT0}, s{sT1}
    s_add_u32 s{SRD_V}, s{sV}, s{sT0}
    s_addc_u32 s{SRD_V + 1}, s{sV + 1}, 0
    s_mov_b32 s{SRD_WS}, s{sWS}
    s_mov_b32 s{SRD_WS + 1}, s{sWS + 1}
    s_cmp_ge_u32 s{sWAVE}, 4
    s_cbranch_scc1 L_helper
    """)

    RING = 128
    Q = 8
    T = 12
    CA, CB = 16, 17
    TM = 18
    MX = 24
    ACC = 32
    PB = (40, 48)
    PLO = 56
    NH = 64
    issued = []
    nxt = [0]

    def slot(j):
        if deep and 8 <= j < 12:
            return 64 + 16 * (j - 8)
        if deep and 12 <= j < 16:
            return RING + 16 * (j - 12)
        return RING + 16 * (j % 8)

    landed = [0]

    def issue1():
        i = nxt[0]
        if i >= 8 * NH:
            return
        j, k = i // 4, i % 4
        srd, so = (SRD_K, sKOFF) if j < NH else (SRD_V, sVOFF)
        r = slot(j)
        A(f"buffer_load_dwordx4 v[{r + 4 * k}:{r + 4 * k + 3}], v2, s[{srd}:{srd + 3}], s{so} offen offset:{1024 * k} nt")
        if k == 3:
            A(f"s_add_u32 s{so}, s{so}, {4096 if j % 2 == 0 else 32768 - 4096}")
        nxt[0] += 1

    def issue_upto(last):
        while nxt[0] <= min(last, 8 * NH - 1):
            issue1()

    def wait_half(j):
        need = 4 * j + 4
        assert nxt[0] >= need
        A(f"s_waitcnt vmcnt({nxt[0] - need})")

    def pstamp():
        if prog:
            A(f"""
            s_memrealtime s[98:99]
            s_waitcnt lgkmcnt(0)
            s_mov_b32 m0, s100
            s_nop 0
            v_writelane_b32 v30, s98, m0
            s_add_u32 s100, s100, 1
            """)

    def kcompute(j):
        if j % 4 == 0:
            pstamp()
        r = slot(j)
        for q in range(4):
            for i in range(4):
                if q == 0:
                    A(f"v_dot2_f32_bf16 v{T + i}, v{r + 4 * i}, v{Q}, 0")
                else:
                    A(f"v_dot2_f32_bf16 v{T + i}, v{r + 4 * i + q}, v{Q + q}, v{T + i}")
        for ro in (8, 4, 2):
            for i in range(4):
                A(f"v_add_f32_dpp v{T + i}, v{T + i}, v{T + i} row_ror:{ro} row_mask:0xf bank_mask:0xf")
        C = CA if j % 2 == 0 else CB
        for i in range(4):
            A(f"v_add_f32_dpp v{C}, v{T + i}, v{T + i} row_ror:1 row_mask:0xf bank_mask:0x{1 << i:x}")
        if j % 2 == 1:
            off = ((j % 8) // 2) * 512
            A(f"""
            v_cvt_pk_bf16_f32 v{TM}, v{CA}, v{CB}
            v_lshlrev_b32 v{TM + 1}, 16, v{TM}
            v_and_b32 v{TM + 2}, s{sMASK}, v{TM}
            v_mul_f32 v{TM + 1}, s{sSCALE}, v{TM + 1}
            v_mul_f32 v{TM + 2}, s{sSCALE}, v{TM + 2}
            v_cvt_pk_bf16_f32 v{TM}, v{TM + 1}, v{TM + 2}
            v_lshlrev_b32 v{TM + 1}, 16, v{TM}
            v_and_b32 v{TM + 2}, s{sMASK}, v{TM}
            ds_write_b32 v4, v{TM + 1} offset:{off}
            ds_write_b32 v4, v{TM + 2} offset:{off + 16}
            v_max3_f32 v{MX}, v{MX}, v{TM + 1}, v{TM + 2}
            """)
            if j % 8 == 7:
                A("v_add_u32 v4, 2048, v4")

    def pread(chunk):
        pb = PB[chunk % 2]
        off = (chunk % 4) * 512
        A(f"ds_read_b128 v[{pb}:{pb + 3}], v3 offset:{off}")
        A(f"ds_read_b128 v[{pb + 4}:{pb + 7}], v3 offset:{off + 16}")

    def vcompute(j):
        if j % 4 == 0:
            pstamp()
        r = RING + 16 * (j % 8)
        pb = PB[(j // 2) % 2] + 4 * (j % 2)
        for i in range(4):
            A(f"v_lshrrev_b32 v{PLO + (i & 1)}, 16, v{pb + i}")
            for q in range(4):
                A(f"v_dot2c_f32_bf16 v{ACC + 2 * q + 1}, v{r + 4 * i + q}, v{pb + i}")
            for q in range(4):
                A(f"v_dot2c_f32_bf16 v{ACC + 2 * q}, v{r + 4 * i + q}, v{PLO + (i & 1)}")

    A("s_mov_b32 s100, 0")
    A("v_mov_b32 v30, 0")
    A(f"s_lshl_b32 s{sKOFF}, s{sWAVE}, 13")
    A(f"s_add_u32 s{sVOFF}, s{sKOFF}, s{sT1}")
    if b0:
        issue_upto(b0 - 2)
        A("s_barrier")
    issue_upto(31)
    A(f"""
    s_lshl_b32 s{sT0}, s{sWAVE}, 7
    v_lshlrev_b32 v3, 5, v5
    v_add_u32 v3, s{sT0}, v3
    v_lshrrev_b32 v4, 2, v6
    v_lshlrev_b32 v4, 2, v4
    v_add_u32 v4, v3, v4
    v_lshlrev_b32 v7, 5, v6             ; c*32
    v_mov_b32 v{MX}, 0xff800000
    """)
    A("s_barrier")
    QT = 32
    for w in range(4):
        A(f"ds_read_b128 v[{QT + 8 * w}:{QT + 3 + 8 * w}], v7 offset:{L_QP + 512 * w}")
        A(f"ds_read_b128 v[{QT + 4 + 8 * w}:{QT + 7 + 8 * w}], v7 offset:{L_QP + 512 * w + 16}")
    A("s_waitcnt lgkmcnt(0)")
    for j in range(8):
        A(f"v_add_f32 v{QT + j}, v{QT + j}, v{QT + 8 + j}")
        A(f"v_add_f32 v{QT + 16 + j}, v{QT + 16 + j}, v{QT + 24 + j}")
    for j in range(8):
        A(f"v_add_f32 v{QT + j}, v{QT + j}, v{QT + 16 + j}")
    for j in range(4):
        A(f"v_cvt_pk_bf16_f32 v{Q + j}, v{QT + 2 * j}, v{QT + 1 + 2 * j}")
    for j in range(8):
        A(f"v_mov_b32 v{ACC + j}, 0")

    def kstep(j, lead):
        wait_half(j)
        issue_upto(min(4 * j + 3 + lead, 4 * j + 31))
        kcompute(j)

    for j in range(8):
        kstep(j, LEAD)
    A(f"s_mov_b32 s{sCNT}, 6")
    A.label("L_kloop")
    d0 = nxt[0] - 32
    for j in range(8, 16):
        kstep(j, LEAD)
    assert nxt[0] - 64 == d0
    A(f"s_sub_u32 s{sCNT}, s{sCNT}, 1")
    A(f"s_cmp_lg_u32 s{sCNT}, 0")
    A("s_cbranch_scc1 L_kloop")
    nxt[0] += 160
    for j in range(56, 64):
        kstep(j, LEAD + 8 * (j - 55))
    issue_upto(4 * 72 - 1)
    for ro in (4, 8):
        A(f"v_max_f32_dpp v{MX}, v{MX}, v{MX} row_ror:{ro} row_mask:0xf bank_mask:0xf")
    A(f"""
    v_mov_b32 v{TM}, v{MX}
    v_permlane16_swap_b32 v{MX}, v{TM}
    v_max_f32 v{MX}, v{MX}, v{TM}
    v_mov_b32 v{TM}, v{MX}
    v_permlane32_swap_b32 v{MX}, v{TM}
    v_max_f32 v{MX}, v{MX}, v{TM}
    s_lshl_b32 s{sT0}, s{sWAVE}, 2
    v_mov_b32 v{TM}, s{sT0}
    ds_write_b32 v{TM}, v{MX} offset:{L_MISC}
    s_waitcnt lgkmcnt(0)
    """)

    def midphase_common(E, TT):
        A("s_barrier")
        A(f"""
        v_lshlrev_b32 v{TT}, 5, v0
        v_mov_b32 v{TT + 1}, 0
        ds_read_b128 v[{E}:{E + 3}], v{TT} offset:{L_SC}
        ds_read_b128 v[{E + 4}:{E + 7}], v{TT} offset:{L_SC + 16}
        ds_read_b128 v[{TT + 4}:{TT + 7}], v{TT + 1} offset:{L_MISC}
        s_waitcnt lgkmcnt(0)
        v_max_f32 v{TT + 4}, v{TT + 4}, v{TT + 5}
        v_max3_f32 v{TT + 4}, v{TT + 4}, v{TT + 6}, v{TT + 7}     ; m_loc
        """)
        for j in range(8):
            A(f"v_sub_f32 v{E + j}, v{E + j}, v{TT + 4}")
        for j in range(8):
            A(f"v_mul_f32 v{E + j}, s{sLOG2E}, v{E + j}")
        for j in range(8):
            A(f"v_exp_f32 v{E + j}, v{E + j}")
        A(f"v_add_f32 v{TT + 2}, v{E}, v{E + 1}")
        for j in range(2, 8):
            A(f"v_add_f32 v{TT + 2}, v{TT + 2}, v{E + j}")
        wave_allreduce("v_add_f32", TT + 2, TT + 3)
        A(f"""
        s_lshl_b32 s{sT0}, s{sWAVE}, 2
        v_mov_b32 v{TT + 3}, s{sT0}
        ds_write_b32 v{TT + 3}, v{TT + 2} offset:{L_MISC + 32}
        s_waitcnt lgkmcnt(0)
        s_barrier
        """)

    def midphase_end(E, TT):
        A("s_barrier")
        A(f"""
        ds_read_b32 v{TT + 2}, v{TT + 1} offset:{L_MISC + 64}
        s_waitcnt lgkmcnt(0)
        """)
        for j in range(8):
            A(f"v_mul_f32 v{E + j}, v{E + j}, v{TT + 2}")
        for j in range(0, 8, 2):
            A(f"v_cvt_pk_bf16_f32 v{TT + 3}, v{E + j}, v{E + j + 1}")
            A(f"v_lshlrev_b32 v{E + j}, 16, v{TT + 3}")
            A(f"v_and_b32 v{E + j + 1}, s{sMASK}, v{TT + 3}")
        A(f"""
        ds_write_b128 v{TT}, v[{E}:{E + 3}] offset:{L_SC}
        ds_write_b128 v{TT}, v[{E + 4}:{E + 7}] offset:{L_SC + 16}
        s_waitcnt lgkmcnt(0)
        s_barrier
        """)

    midphase_common(64, 72)
    midphase_end(64, 72)

    VE, VTA, VPA, VAD, VG = 60, 58, 59, 31, 64
    sNV, sNP, sNX, sLC, sAX, sW13 = 64, 66, 67, 68, 69, 70
    pread(0)
    A(f"""
    v_mov_b32 v{VTA}, {L_TAB}
    v_mov_b32 v{VG}, v3
    v_lshl_add_u32 v{VAD}, v5, 2, v7               ; (8c+g)*4
    s_mov_b32 s{sLC}, s{sXC}
    s_mov_b32 s{sAX}, s{sXC}
    s_lshl_b32 s{sW13}, s{sWAVE}, 13
    """)

    def vstep(jv):
        j = NH + jv
        if jv % 2 == 0:
            A("s_waitcnt lgkmcnt(0)")
        else:
            if jv % 8 == 7:
                A("v_add_u32 v3, 2048, v3")
            pread(jv // 2 + 1)
        wait_half(j)
        issue_upto(4 * j + 3 + 8)
        vcompute(jv)

    def vloads(r):
        for i in range(4):
            A(f"buffer_load_dwordx4 v[{r + 4 * i}:{r + 4 * i + 3}], v2, s[{SRD_V}:{SRD_V + 3}], s{sVOFF} offen offset:{1024 * i} nt")

    def flush():
        reduce8(ACC)
        A(f"""
        s_lshl_b32 s{sT0}, s{sAX}, 9
        v_add_u32 v{TM}, s{sT0}, v{VAD}
        ds_add_f32 v{TM}, v{ACC} offset:{L_ACC}
        ds_add_f32 v{TM}, v{ACC + 4} offset:{L_ACC + 16}
        """)

    def flushz(tag):
        flush()
        for j in range(8):
            A(f"v_mov_b32 v{ACC + j}, 0")
        A(f"""
        s_bitcmp1_b32 s{sLC}, 8
        s_cbranch_scc0 L_nosig{tag}
        v_mov_b32 v{TM + 1}, 1
        v_mov_b32 v{TM + 2}, 0
        s_mov_b64 exec, 1
        ds_add_u32 v{TM + 2}, v{TM + 1} offset:{L_MISC + 132}
        s_mov_b64 exec, -1
        L_nosig{tag}:
        s_and_b32 s{sLC}, s{sLC}, 7
        s_mov_b32 s{sAX}, s{sLC}
        """)

    for jv in range(8):
        vstep(jv)
    assert nxt[0] == 4 * (NH + 10), nxt
    A(f"ds_read_b128 v[{VE}:{VE + 3}], v{VTA}")
    for k in range(4):
        k1 = (k + 1) % 4
        A(f"""
        L_row{k}:
        s_waitcnt lgkmcnt(0)
        v_readfirstlane_b32 s{sNV}, v{VE}
        v_readfirstlane_b32 s{sNP}, v{VE + 1}
        v_readfirstlane_b32 s{sNX}, v{VE + 2}
        s_cmp_ge_u32 s{sNV}, -2
        s_cbranch_scc1 L_odd{k}
        v_add_u32 v{VTA}, 16, v{VTA}
        s_add_u32 s{sVOFF}, s{sNV}, s{sW13}
        v_add_u32 v{VPA}, s{sNP}, v{VG}
        ds_read_b128 v[{VE}:{VE + 3}], v{VTA}
        s_waitcnt vmcnt(4)
        """)
        vloads(RING + 32 * k1)
        A(f"""
        s_add_u32 s{sVOFF}, s{sVOFF}, 4096
        s_cmp_lg_u32 s{sLC}, s{sAX}
        s_cbranch_scc1 L_flush{k}
        L_fback{k}:
        """)
        vcompute(2 * k)
        pb = PB[(k + 1) % 2]
        A(f"ds_read_b128 v[{pb}:{pb + 3}], v{VPA}")
        A(f"ds_read_b128 v[{pb + 4}:{pb + 7}], v{VPA} offset:16")
        A("s_waitcnt vmcnt(4)")
        vloads(RING + 32 * k1 + 16)
        vcompute(2 * k + 1)
        A(f"s_mov_b32 s{sLC}, s{sNX}")
    A("s_branch L_row0")
    for k in range(4):
        A.label(f"L_flush{k}")
        A("s_nop 4")
        flushz(f"a{k}")
        A(f"s_branch L_fback{k}")
        A(f"""
        L_odd{k}:
        s_cmp_eq_u32 s{sNV}, -1
        s_cbranch_scc1 L_last{k}
        s_mov_b32 s{sSPIN}, 0
        L_pend{k}:
        ds_read_b128 v[{VE}:{VE + 3}], v{VTA}
        s_waitcnt lgkmcnt(0)
        v_readfirstlane_b32 s{sNV}, v{VE}
        s_add_u32 s{sSPIN}, s{sSPIN}, 1
        s_cmp_gt_u32 s{sSPIN}, {SPIN * 40}
        s_cbranch_scc1 L_last{k}
        s_cmp_eq_u32 s{sNV}, -2
        s_cbranch_scc1 L_pend{k}
        s_branch L_row{k}
        L_last{k}:
        s_cmp_eq_u32 s{sLC}, s{sAX}
        s_cbranch_scc1 L_last2{k}
        """)
        flushz(f"b{k}")
        A.label(f"L_last2{k}")
        A("s_waitcnt vmcnt(4)")
        vcompute(2 * k)
        A("s_waitcnt vmcnt(0)")
        vcompute(2 * k + 1)
        A("s_branch L_vdone")
    A.label("L_vdone")
    pstamp()
    if prog:
        A(f"""
        s_lshl_b32 s{sT0}, s2, 10
        s_lshl_b32 s{sT1}, s{sWAVE}, 8
        s_add_u32 s{sT0}, s{sT0}, s{sT1}
        s_add_u32 s{sT0}, s{sT0}, {STAMP_OFF + (1 << 20)}
        v_lshlrev_b32 v29, 2, v1
        v_add_u32 v29, s{sT0}, v29
        global_store_dword v29, v30, s[{sWS}:{sWS + 1}]
        """)
    A("s_nop 4")
    flush()
    A(f"""
    s_waitcnt lgkmcnt(0)
    s_barrier
    s_endpgm
    """)

    A.label("L_helper")
    W = 128
    if prio:
        A("s_setprio 3")
    stamp(2)
    A(f"""
    s_sub_u32 s{sHW}, s{sWAVE}, 4
    s_lshl_b32 s{sT0}, s{sB}, 10
    v_add_u32 v7, s{sT0}, v2
    global_load_dwordx4 v[8:11], v7, s[{sX}:{sX + 1}]
    s_lshl_b32 s{sT0}, s{sH}, 8
    s_add_u32 s{SRD_T}, s{sWQ}, s{sT0}
    s_addc_u32 s{SRD_T + 1}, s{sWQ + 1}, 0
    s_sub_u32 s{SRD_T + 2}, 0x400000, s{sT0}
    s_lshl_b32 s{sT1}, s{sHW}, 20          ; 128*w' rows * 8192
    v_lshlrev_b32 v7, 18, v5               ; 32*g*8192
    v_lshl_add_u32 v7, v6, 4, v7
    """)
    for i in range(32):
        if 'q' in skip and i >= 4:
            A("s_nop 0")
            continue
        A(f"buffer_load_dwordx4 v[{W + 4 * i}:{W + 4 * i + 3}], v7, s[{SRD_T}:{SRD_T + 3}], s{sT1} offen {qnt}")
        if i < 31:
            A(f"s_add_u32 s{sT1}, s{sT1}, 8192")
    if b0:
        A("s_barrier")
    A(f"""
    v_mov_b32 v12, 0
    v_mov_b32 v13, 0
    v_mov_b32 v14, 0
    v_mov_b32 v15, 0
    s_lshl_b32 s{sT0}, s{sHW}, 10
    v_add_u32 v16, s{sT0}, v2
    ds_write_b128 v16, v[12:15] offset:{L_ACC}
    ds_write_b32 v12, v12 offset:{L_MISC + 132}
    """)
    stamp(2)
    A("s_waitcnt vmcnt(4)" if 'q' in skip else "s_waitcnt vmcnt(32)")
    stamp(2)
    layernorm(8, 16, 24)
    stamp(2)
    A(f"""
    v_lshlrev_b32 v7, 5, v1
    ds_write_b128 v7, v[16:19] offset:{L_XN}
    ds_write_b128 v7, v[20:23] offset:{L_XN + 16}
    s_lshl_b32 s{sT0}, s{sHW}, 9
    v_lshlrev_b32 v7, 7, v5
    v_add_u32 v7, s{sT0}, v7               ; (128w'+32g)*4
    s_waitcnt lgkmcnt(0)
    """)
    for n in range(8):
        A(f"ds_read_b128 v[{64 + 4 * n}:{67 + 4 * n}], v7 offset:{L_XN + 16 * n}")
    for j in range(8):
        A(f"v_mov_b32 v{32 + j}, 0")
    A("s_waitcnt lgkmcnt(0)")
    for i in range(32):
        if i % 4 == 0:
            A(f"s_waitcnt vmcnt({0 if 'q' in skip else 28 - i})")
            if i % 8 == 0 or i == 28:
                stamp(2)
        A(f"v_lshrrev_b32 v{30 + (i & 1)}, 16, v{64 + i}")
        for q in range(4):
            A(f"v_dot2c_f32_bf16 v{32 + 2 * q + 1}, v{W + 4 * i + q}, v{64 + i}")
        for q in range(4):
            A(f"v_dot2c_f32_bf16 v{32 + 2 * q}, v{W + 4 * i + q}, v{30 + (i & 1)}")
    reduce8(32)
    A(f"""
    v_lshlrev_b32 v7, 5, v6
    v_lshl_add_u32 v7, v5, 2, v7
    s_lshl_b32 s{sT0}, s{sHW}, 9
    v_add_u32 v7, s{sT0}, v7
    ds_write_b32 v7, v32 offset:{L_QP}
    ds_write_b32 v7, v36 offset:{L_QP + 16}
    s_waitcnt lgkmcnt(0)
    s_barrier
    """)
    stamp(0)
    A(f"""
    s_mov_b32 s{sTAIL}, s{sR}
    s_cmp_eq_u32 s{sXC}, 0
    s_cselect_b32 s{sTAIL}, s{sTAIL}, -1
    s_cmp_lg_u32 s{sHW}, 0
    s_cbranch_scc1 L_noclear
    v_mov_b32 v8, -1
    v_mov_b32 v9, -1
    v_mov_b32 v10, -1
    v_mov_b32 v11, -1
    s_lshl_b32 s{sT0}, s{sLIST}, 10
    s_add_u32 s{sT0}, s{sT0}, {W_Y}
    {'' if 'c' in skip else f'''buffer_store_dwordx4 v[8:11], v2, s[{SRD_WS}:{SRD_WS + 3}], s{sT0} offen sc1'''}
    s_mov_b32 exec_lo, -1
    s_mov_b32 exec_hi, 0
    s_lshl_b32 s{sT0}, s2, 9
    s_add_u32 s{sT0}, s{sT0}, {W_OT}
    buffer_store_dwordx4 v[8:11], v2, s[{SRD_WS}:{SRD_WS + 3}], s{sT0} offen sc1
    s_mov_b64 exec, 1
    s_lshl_b32 s{sT0}, s{sR}, 7
    s_lshl_b32 s{sT1}, s{sXC}, 2
    s_add_u32 s{sT0}, s{sT0}, s{sT1}
    s_add_u32 s{sT0}, s{sT0}, {W_TM}
    buffer_store_dword v8, v2, s[{SRD_WS}:{SRD_WS + 3}], s{sT0} offen sc1
    s_mov_b64 exec, 0xff
    s_lshl_b32 s{sT0}, s2, 7
    s_add_u32 s{sT0}, s{sT0}, {W_ML}
    {'' if 'c' in skip else f'''buffer_store_dwordx4 v[8:11], v2, s[{SRD_WS}:{SRD_WS + 3}], s{sT0} offen sc1'''}
    s_cmp_lg_u32 s{sXC}, 0
    s_cbranch_scc1 L_noclear2
    s_lshl_b32 s{sT0}, s{sR}, 7
    s_add_u32 s{sT0}, s{sT0}, {W_H}
    {'' if 'c' in skip else f'''buffer_store_dwordx4 v[8:11], v2, s[{SRD_WS}:{SRD_WS + 3}], s{sT0} offen sc1'''}
    s_mov_b64 exec, -1
    s_lshl_b32 s{sT0}, s{sR}, 13
    s_add_u32 s{sT0}, s{sT0}, {W_PO}
    s_add_u32 s{sT1}, s{sT0}, 4096
    {'' if 'c' in skip else f'''buffer_store_dwordx4 v[8:11], v2, s[{SRD_WS}:{SRD_WS + 3}], s{sT0} offen sc1'''}
    {'' if 'c' in skip else f'''buffer_store_dwordx4 v[8:11], v2, s[{SRD_WS}:{SRD_WS + 3}], s{sT0} offen offset:1024 sc1'''}
    {'' if 'c' in skip else f'''buffer_store_dwordx4 v[8:11], v2, s[{SRD_WS}:{SRD_WS + 3}], s{sT0} offen offset:2048 sc1'''}
    {'' if 'c' in skip else f'''buffer_store_dwordx4 v[8:11], v2, s[{SRD_WS}:{SRD_WS + 3}], s{sT0} offen offset:3072 sc1'''}
    {'' if 'c' in skip else f'''buffer_store_dwordx4 v[8:11], v2, s[{SRD_WS}:{SRD_WS + 3}], s{sT1} offen sc1'''}
    {'' if 'c' in skip else f'''buffer_store_dwordx4 v[8:11], v2, s[{SRD_WS}:{SRD_WS + 3}], s{sT1} offen offset:1024 sc1'''}
    {'' if 'c' in skip else f'''buffer_store_dwordx4 v[8:11], v2, s[{SRD_WS}:{SRD_WS + 3}], s{sT1} offen offset:2048 sc1'''}
    {'' if 'c' in skip else f'''buffer_store_dwordx4 v[8:11], v2, s[{SRD_WS}:{SRD_WS + 3}], s{sT1} offen offset:3072 sc1'''}
    s_mov_b64 exec, 1
    s_getreg_b32 s{sT1}, hwreg(HW_REG_XCC_ID)
    s_and_b32 s{sT1}, s{sT1}, 15
    v_mov_b32 v12, s{sT1}
    s_lshl_b32 s{sT0}, s{sR}, 2
    s_add_u32 s{sT0}, s{sT0}, {W_XID}
    buffer_store_dword v12, v2, s[{SRD_WS}:{SRD_WS + 3}], s{sT0} offen sc1
    L_noclear2:
    s_mov_b64 exec, 1
    v_mov_b32 v12, 1
    v_mov_b32 v13, 0
    s_waitcnt vmcnt(0)
    global_atomic_add v13, v12, s[{sDBG}:{sDBG + 1}]
    s_mov_b64 exec, -1
    L_noclear:
    """)
    A(f"""
    s_lshl_b32 s{sT0}, s{sH}, 17
    s_lshl_b32 s{sT1}, s{sHALF}, 9
    s_add_u32 s{sT0}, s{sT0}, s{sT1}
    s_add_u32 s{SRD_T}, s{sWO}, s{sT0}
    s_addc_u32 s{SRD_T + 1}, s{sWO + 1}, 0
    s_sub_u32 s{SRD_T + 2}, 0x400000, s{sT0}
    v_lshrrev_b32 v8, 5, v1                ; hi
    v_and_b32 v9, 31, v1                   ; c32
    v_lshlrev_b32 v7, 10, v8
    v_lshl_add_u32 v7, v9, 4, v7
    s_lshl_b32 s{sT1}, s{sHW}, 15          ; 32 w' rows * 1024
    """)
    for i in range(16):
        if 'o' not in skip:
            A(f"buffer_load_dwordx4 v[{W + 4 * i}:{W + 4 * i + 3}], v7, s[{SRD_T}:{SRD_T + 3}], s{sT1} offen offset:{2048 * (i & 1)} {qnt}")
        if i & 1 and i < 15:
            A(f"s_add_u32 s{sT1}, s{sT1}, 4096")
    A(f"""
    v_mul_u32_u24 v7, {WO_P}, v8
    v_lshl_add_u32 v7, v9, 4, v7
    s_mul_i32 s{sT0}, s{sHW}, {32 * WO_P}
    s_add_u32 s{sT0}, s{sT0}, {L_WO}
    v_add_u32 v7, s{sT0}, v7
    """)
    for i in range(16):
        A(f"s_waitcnt vmcnt({15 - i})")
        A(f"ds_write_b128 v7, v[{W + 4 * i}:{W + 4 * i + 3}] offset:{2 * WO_P * i}")
    F1 = 128
    F2 = 64
    XR = 63
    A(f"""
    s_cmp_lg_u32 s{sXC}, 0
    s_cbranch_scc1 L_noffn
    s_lshl_b32 s{sT0}, s{sR}, 7
    v_and_b32 v8, 31, v1
    v_lshl_add_u32 v8, v8, 2, s{sT0}
    global_load_dword v{XR}, v8, s[{sX}:{sX + 1}]
    s_cmp_ge_u32 s{sR}, {0 if 'f' in skip else 28}
    s_cbranch_scc1 L_noffn1
    s_waitcnt lgkmcnt(0)
    s_mov_b32 s{SRD_T}, s{sWD}
    s_mov_b32 s{SRD_T + 1}, s{sWD + 1}
    s_mov_b32 s{SRD_T + 2}, {1792 * 1024}
    v_lshlrev_b32 v7, 10, v5
    v_lshl_add_u32 v7, v6, 4, v7           ; g*1024 + c*16
    s_lshl_b32 s{sT0}, s{sR}, 16
    s_lshl_b32 s{sT1}, s{sHW}, 8
    s_add_u32 s{sT1}, s{sT1}, s{sT0}
    """)
    for i in range(16):
        A(f"buffer_load_dwordx4 v[{F2 + 4 * i}:{F2 + 4 * i + 3}], v7, s[{SRD_T}:{SRD_T + 3}], s{sT1} offen {WNT}")
        A(f"s_add_u32 s{sT1}, s{sT1}, 4096")
    A(f"""
    v_lshrrev_b32 v8, 3, v1
    v_and_b32 v9, 7, v1
    v_mul_u32_u24 v7, 3584, v8
    v_lshl_add_u32 v7, v9, 4, v7
    s_mov_b32 s{SRD_T + 2}, {512 * 3584}
    """)
    for m, sp in enumerate((sWG, sWU)):
        A(f"""
        s_mov_b32 s{SRD_T}, s{sp}
        s_mov_b32 s{SRD_T + 1}, s{sp + 1}
        s_mul_i32 s{sT1}, s{sHW}, {128 * 3584}
        s_lshl_b32 s{sT0}, s{sR}, 7
        s_add_u32 s{sT1}, s{sT1}, s{sT0}
        """)
        for i in range(16):
            r = F1 + 64 * m + 4 * i
            A(f"buffer_load_dwordx4 v[{r}:{r + 3}], v7, s[{SRD_T}:{SRD_T + 3}], s{sT1} offen {WNT}")
            A(f"s_add_u32 s{sT1}, s{sT1}, {8 * 3584}")
    A(f"""
    s_mul_i32 s{sT0}, s{sHW}, {STG_SZ}
    s_add_u32 s{sT0}, s{sT0}, {L_STG}
    v_mul_u32_u24 v10, 288, v5
    v_lshl_add_u32 v10, v6, 4, v10
    v_add_u32 v10, s{sT0}, v10             ; wd staging write: g*288 + c*16
    v_mul_u32_u24 v11, 160, v8
    v_lshl_add_u32 v11, v9, 4, v11
    v_add_u32 v11, s{sT0}, v11             ; g/u staging write: (l>>3)*160 + (l&7)*16
    v_lshrrev_b32 v12, 2, v6
    v_lshl_add_u32 v12, v5, 2, v12         ; row = 4g + (c>>2)
    v_and_b32 v13, 3, v6
    v_lshlrev_b32 v13, 3, v13
    v_add_u32 v13, s{sT0}, v13
    v_mad_u32_u24 v14, v12, 288, v13       ; invalid literal? replaced below
    """.replace("v_mad_u32_u24 v14, v12, 288, v13       ; invalid literal? replaced below",
                "v_mul_u32_u24 v14, 288, v12\nv_add_u32 v14, v14, v13\nv_mul_u32_u24 v15, 160, v12\nv_add_u32 v15, v15, v13"))
    for ks in range(2):
        A(f"s_waitcnt vmcnt({32 + 8 - 8 * ks})")
        for i in range(8):
            r = F2 + 32 * ks + 4 * i
            A(f"ds_write_b128 v10, v[{r}:{r + 3}] offset:{4 * 288 * i}")
        for nt in range(8):
            r = F2 + 32 * ks + 4 * nt
            A(f"ds_read_b64_tr_b16 v[{r}:{r + 1}], v14 offset:{32 * nt}")
            A(f"ds_read_b64_tr_b16 v[{r + 2}:{r + 3}], v14 offset:{16 * 288 + 32 * nt}")
    for ms in range(8):
        A(f"s_waitcnt vmcnt({28 - 4 * ms})")
        for i in range(4):
            r = F1 + 16 * ms + 4 * i
            A(f"ds_write_b128 v11, v[{r}:{r + 3}] offset:{8 * 160 * i}")
        for nt in range(4):
            r = F1 + 16 * ms + 4 * nt
            A(f"ds_read_b64_tr_b16 v[{r}:{r + 1}], v15 offset:{32 * nt}")
            A(f"ds_read_b64_tr_b16 v[{r + 2}:{r + 3}], v15 offset:{16 * 160 + 32 * nt}")
    A(f"""
    L_noffn1:
    s_waitcnt vmcnt(0)
    L_noffn:
    s_waitcnt lgkmcnt(0)
    """)
    A(f"""
    s_cmp_lg_u32 s{sHW}, 0
    s_cbranch_scc1 L_noarr
    v_add_u32 v8, 5, v1
    v_lshlrev_b32 v9, 9, v8
    v_lshlrev_b32 v8, 15, v8
    s_lshl_b32 s{sT0}, s{sXC}, 21
    v_add_u32 v8, s{sT0}, v8
    v_add_u32 v9, {L_SC}, v9
    v_mov_b32 v10, s{sXC}
    v_mov_b32 v11, 0
    v_cmp_gt_u32 vcc, 19, v1
    v_cndmask_b32 v8, -2, v8, vcc
    v_add_u32 v12, {L_TAB}, v2
    ds_write_b128 v12, v[8:11]
    v_mov_b32 v17, 0
    s_mov_b32 s{sSPIN}, 0
    L_arr:
    global_load_dword v24, v17, s[{sDBG}:{sDBG + 1}] sc1
    s_waitcnt vmcnt(0)
    v_readfirstlane_b32 s{sT0}, v24
    s_add_u32 s{sSPIN}, s{sSPIN}, 1
    s_cmp_gt_u32 s{sSPIN}, {SPIN}
    s_cbranch_scc1 L_noarr
    s_cmp_lt_u32 s{sT0}, 256
    s_cbranch_scc1 L_arr
    L_noarr:
    s_waitcnt lgkmcnt(0)
    """)
    stamp()
    midphase_common(8, 16)
    stamp()
    A(f"""
    s_cmp_lg_u32 s{sHW}, 0
    s_cbranch_scc1 L_noex
    s_memrealtime s[{sTS}:{sTS + 1}]
    ds_read_b128 v[24:27], v17 offset:{L_MISC + 32}
    ds_read_b128 v[28:31], v17 offset:{L_MISC + 48}
    s_waitcnt lgkmcnt(0)
    v_add_f32 v24, v24, v25
    v_add_f32 v26, v26, v27
    v_add_f32 v28, v28, v29
    v_add_f32 v30, v30, v31
    v_add_f32 v24, v24, v26
    v_add_f32 v28, v28, v30
    v_add_f32 v21, v24, v28
    s_mov_b64 exec, 1
    s_lshl_b32 s{sT0}, s2, 7
    s_add_u32 s{sT0}, s{sT0}, {W_ML}
    buffer_store_dwordx2 v[20:21], v17, s[{SRD_WS}:{SRD_WS + 3}], s{sT0} offen sc1
    s_mov_b64 exec, -1
    s_mov_b64 exec, 1
    s_and_b32 s{sT2}, s{sTS}, 0x7fffffff
    v_mov_b32 v24, s{sT2}
    s_lshl_b32 s{sT0}, s{sR}, 7
    s_lshl_b32 s{sT1}, s{sXC}, 2
    s_add_u32 s{sT0}, s{sT0}, s{sT1}
    s_add_u32 s{sT0}, s{sT0}, {W_TM}
    buffer_store_dword v24, v17, s[{SRD_WS}:{SRD_WS + 3}], s{sT0} offen sc1
    s_mov_b64 exec, -1
    s_xor_b32 s{sT1}, s2, 8
    s_lshl_b32 s{sT1}, s{sT1}, 7
    s_add_u32 s{sT1}, s{sT1}, {W_ML}
    """)
    poll([f"buffer_load_dwordx2 v[24:25], v17, s[{SRD_WS}:{SRD_WS + 3}], s{sT1} offen sc1"], [24, 25], "ml")
    A(f"""
    v_max_f32 v26, v20, v24            ; m
    v_sub_f32 v27, v20, v26
    v_sub_f32 v28, v24, v26
    v_mul_f32 v27, s{sLOG2E}, v27
    v_mul_f32 v28, s{sLOG2E}, v28
    v_exp_f32 v27, v27
    v_exp_f32 v28, v28
    v_mul_f32 v29, v21, v27
    v_mul_f32 v30, v25, v28
    v_add_f32 v29, v29, v30            ; l
    v_rcp_f32 v30, v29
    v_mul_f32 v31, v27, v30
    v_fma_f32 v24, -v31, v29, v27
    v_fma_f32 v31, v24, v30, v31       ; c = f/l
    ds_write_b32 v17, v31 offset:{L_MISC + 64}
    s_waitcnt lgkmcnt(0)
    L_noex:
    """)
    stamp()
    midphase_end(8, 16)
    if local:
        A(f"""
        s_mov_b32 s{sLOCAL}, 0
        s_cmp_lg_u32 s{sXC}, 0
        s_cbranch_scc1 L_noloc
        v_and_b32 v8, 31, v1
        v_lshlrev_b32 v8, 2, v8
        s_mov_b32 s{sT0}, {W_XID}
        buffer_load_dword v9, v8, s[{SRD_WS}:{SRD_WS + 3}], s{sT0} offen sc1
        s_waitcnt vmcnt(0)
        v_readfirstlane_b32 s{sT1}, v9
        v_cmp_ne_u32 vcc, s{sT1}, v9
        s_cmp_eq_u64 vcc, 0
        s_cselect_b32 s{sLOCAL}, 1, 0
        L_noloc:
        """)
    sD0, sDN, sR0, sRN, sE, sJ, sMK, sKK = 66, 67, 68, 69, 71, 100, 101, 58
    A(f"""
    s_cmp_lg_u32 s{sHW}, 0
    s_cbranch_scc1 L_noplan
    v_and_b32 v8, 7, v1
    v_lshlrev_b32 v9, 2, v8
    s_lshl_b32 s{sT0}, s{sR}, 7
    s_add_u32 s{sT0}, s{sT0}, {W_TM}
    """)
    poll([f"buffer_load_dword v10, v9, s[{SRD_WS}:{SRD_WS + 3}], s{sT0} offen sc1"], [10], "tm", sleep=8)
    A(f"""
    v_readfirstlane_b32 s{sT0}, v10
    v_subrev_u32 v10, s{sT0}, v10
    v_lshlrev_b32 v10, 1, v10
    v_ashrrev_i32 v10, 1, v10
    v_cvt_f32_i32 v10, v10
    v_add_f32_dpp v11, v10, v10 row_ror:1 row_mask:0xf bank_mask:0xf
    v_add_f32_dpp v11, v11, v11 row_ror:2 row_mask:0xf bank_mask:0xf
    v_add_f32_dpp v11, v11, v11 row_ror:4 row_mask:0xf bank_mask:0xf
    v_readfirstlane_b32 s{sT0}, v11
    v_mov_b32 v11, s{sT0}
    s_mov_b32 s{sT1}, 0xbe000000
    v_fma_f32 v10, v11, s{sT1}, v10        ; t - mean
    v_mul_f32 v10, 0x{ROWRATE:08x}, v10
    v_rndne_f32 v10, v10
    v_cvt_i32_f32 v10, v10
    v_max_i32 v11, 0, v10
    v_min_i32 v11, {GMAX}, v11             ; d
    v_sub_u32 v12, 0, v10
    v_max_i32 v12, 0, v12
    v_min_i32 v12, {GMAX}, v12             ; r
    v_cmp_gt_u32 vcc, 8, v1
    v_cndmask_b32 v11, 0, v11, vcc
    v_cndmask_b32 v12, 0, v12, vcc
    v_mov_b32 v13, v11
    v_mov_b32 v14, v12
    """)
    for sh_ in (1, 2, 4):
        A(f"v_add_u32_dpp v13, v13, v13 row_shr:{sh_} row_mask:0xf bank_mask:0xf bound_ctrl:0")
        A(f"v_add_u32_dpp v14, v14, v14 row_shr:{sh_} row_mask:0xf bank_mask:0xf bound_ctrl:0")
    A(f"""
    v_readlane_b32 s{sT0}, v13, 7
    v_readlane_b32 s{sT1}, v14, 7
    v_sub_u32 v13, v13, v11                ; D excl
    v_sub_u32 v14, v14, v12                ; R excl
    s_min_u32 s{sT0}, s{sT0}, s{sT1}
    v_sub_u32 v15, s{sT0}, v13
    v_max_i32 v15, 0, v15
    v_min_i32 v11, v11, v15                ; d'
    v_sub_u32 v15, s{sT0}, v14
    v_max_i32 v15, 0, v15
    v_min_i32 v12, v12, v15                ; r'
    v_add_u32 v16, v13, v11                ; D end
    v_add_u32 v17, v14, v12                ; R end
    v_readlane_b32 s{sD0}, v13, s{sXC}
    v_readlane_b32 s{sDN}, v11, s{sXC}
    v_readlane_b32 s{sR0}, v14, s{sXC}
    v_readlane_b32 s{sRN}, v12, s{sXC}
    v_mov_b32 v30, 0
    v_mov_b32 v31, {L_TAB + 19 * 16}
    s_mov_b32 s{sMK}, 0
    s_cmp_eq_u32 s{sDN}, 0
    s_cbranch_scc1 L_nodon
    s_mov_b32 s{sE}, 0
    v_and_b32 v18, 31, v1
    v_lshlrev_b32 v18, 4, v18
    s_mov_b32 exec_hi, 0
    L_don:
    s_sub_u32 s{sT0}, 31, s{sE}
    s_lshl_b32 s{sT0}, s{sT0}, 9
    v_add_u32 v19, s{sT0}, v18
    ds_read_b128 v[20:23], v19 offset:{L_SC}
    s_lshl_b32 s{sT0}, s2, 12
    s_lshl_b32 s{sT1}, s{sE}, 9
    s_add_u32 s{sT0}, s{sT0}, s{sT1}
    s_add_u32 s{sT0}, s{sT0}, {W_P}
    s_waitcnt lgkmcnt(0)
    buffer_store_dwordx4 v[20:23], v18, s[{SRD_WS}:{SRD_WS + 3}], s{sT0} offen sc1
    s_add_u32 s{sE}, s{sE}, 1
    s_cmp_lt_u32 s{sE}, s{sDN}
    s_waitcnt vmcnt(0)
    s_cbranch_scc1 L_don
    s_mov_b64 exec, 1
    s_lshl_b32 s{sT0}, s2, 7
    s_add_u32 s{sT0}, s{sT0}, {W_ML + 16}
    buffer_store_dword v30, v30, s[{SRD_WS}:{SRD_WS + 3}], s{sT0} offen sc1
    s_mov_b64 exec, -1
    L_nodon:
    s_mov_b32 s{sE}, 0
    v_and_b32 v18, 31, v1
    v_lshlrev_b32 v18, 4, v18
    L_rcv:
    s_cmp_ge_u32 s{sE}, s{sRN}
    s_cbranch_scc1 L_rcvx
    s_add_u32 s{sKK}, s{sR0}, s{sE}
    v_cmp_ge_u32 vcc, s{sKK}, v13
    v_cmp_lt_u32 s[{sT2}:{sT3}], s{sKK}, v16
    s_and_b64 vcc, vcc, s[{sT2}:{sT3}]
    s_and_b32 s{sT0}, vcc_lo, 0xff
    s_ff1_i32_b32 s{sJ}, s{sT0}
    s_and_b32 s{sJ}, s{sJ}, 7
    v_readlane_b32 s{sT0}, v13, s{sJ}
    s_sub_u32 s{sKK}, s{sKK}, s{sT0}
    s_lshl_b32 s{sT0}, 1, s{sJ}
    s_or_b32 s{sMK}, s{sMK}, s{sT0}
    s_lshl_b32 s{sT0}, s{sR}, 3
    s_add_u32 s{sT0}, s{sT0}, s{sJ}
    s_lshl_b32 s{sT1}, s{sT0}, 12
    s_lshl_b32 s{sT0}, s{sT0}, 7
    s_add_u32 s{sT0}, s{sT0}, {W_ML + 16}
    """)
    poll([f"buffer_load_dword v19, v30, s[{SRD_WS}:{SRD_WS + 3}], s{sT0} offen sc1"], [19], "pf", sleep=4)
    A(f"""
    s_lshl_b32 s{sT0}, s{sKK}, 9
    s_add_u32 s{sT1}, s{sT1}, s{sT0}
    s_add_u32 s{sT1}, s{sT1}, {W_P}
    buffer_load_dwordx4 v[20:23], v18, s[{SRD_WS}:{SRD_WS + 3}], s{sT1} offen sc1
    s_lshl_b32 s{sT0}, s{sE}, 9
    s_add_u32 s{sT0}, s{sT0}, {L_EXT}
    v_add_u32 v19, s{sT0}, v18
    v_mov_b32 v25, s{sT0}
    s_sub_u32 s{sKK}, 31, s{sKK}
    s_lshl_b32 s{sKK}, s{sKK}, 15
    s_lshl_b32 s{sT0}, s{sJ}, 21
    s_add_u32 s{sKK}, s{sKK}, s{sT0}
    v_mov_b32 v24, s{sKK}
    v_mov_b32 v26, s{sJ}
    v_mov_b32 v27, 0
    s_waitcnt vmcnt(0)
    ds_write_b128 v19, v[20:23]
    ds_write_b128 v31, v[24:27]
    v_add_u32 v31, 16, v31
    s_add_u32 s{sE}, s{sE}, 1
    s_branch L_rcv
    L_rcvx:
    v_add_u32 v24, 24, v1
    v_lshlrev_b32 v25, 9, v24
    v_lshlrev_b32 v24, 15, v24
    s_lshl_b32 s{sT0}, s{sXC}, 21
    v_add_u32 v24, s{sT0}, v24
    v_add_u32 v25, {L_SC}, v25
    s_or_b32 s{sT1}, s{sXC}, 0x100
    v_mov_b32 v26, s{sXC}
    v_mov_b32 v28, s{sT1}
    v_cmp_eq_u32 vcc, 0, v1
    v_cndmask_b32 v26, v26, v28, vcc
    s_cmp_eq_u32 s{sRN}, 0
    s_cbranch_scc0 L_keepflag
    v_mov_b32 v26, s{sXC}
    L_keepflag:
    v_mov_b32 v27, 0
    s_sub_u32 s{sT0}, 8, s{sDN}
    v_cmp_gt_u32 vcc, s{sT0}, v1
    v_cndmask_b32 v24, -1, v24, vcc
    v_add_u32 v19, v31, v2
    s_mov_b64 exec, 0x1ff
    ds_write_b128 v19, v[24:27]
    s_mov_b64 exec, -1
    s_cmp_eq_u32 s{sRN}, 0
    s_cbranch_scc1 L_nosend
    s_mov_b32 s{sSPIN}, 0
    L_wsig:
    s_sleep 4
    ds_read_b32 v19, v30 offset:{L_MISC + 132}
    s_waitcnt lgkmcnt(0)
    v_readfirstlane_b32 s{sT0}, v19
    s_add_u32 s{sSPIN}, s{sSPIN}, 1
    s_cmp_gt_u32 s{sSPIN}, {SPIN * 20}
    s_cbranch_scc1 L_snd
    s_cmp_lt_u32 s{sT0}, 4
    s_cbranch_scc1 L_wsig
    L_snd:
    s_ff1_i32_b32 s{sJ}, s{sMK}
    s_lshl_b32 s{sT0}, 1, s{sJ}
    s_xor_b32 s{sMK}, s{sMK}, s{sT0}
    s_lshl_b32 s{sT0}, s{sJ}, 9
    v_add_u32 v19, s{sT0}, v18
    ds_read_b128 v[20:23], v19 offset:{L_ACC}
    s_lshl_b32 s{sT0}, s{sR}, 3
    s_add_u32 s{sT0}, s{sT0}, s{sJ}
    s_lshl_b32 s{sT0}, s{sT0}, 12
    s_lshl_b32 s{sT1}, s{sXC}, 9
    s_add_u32 s{sT0}, s{sT0}, s{sT1}
    s_add_u32 s{sT0}, s{sT0}, {W_O}
    s_mov_b32 exec_hi, 0
    s_waitcnt lgkmcnt(0)
    buffer_store_dwordx4 v[20:23], v18, s[{SRD_WS}:{SRD_WS + 3}], s{sT0} offen sc1
    s_lshl_b32 s{sT0}, s{sR}, 3
    s_add_u32 s{sT0}, s{sT0}, s{sJ}
    s_lshl_b32 s{sT0}, s{sT0}, 7
    s_lshl_b32 s{sT1}, s{sXC}, 2
    s_add_u32 s{sT0}, s{sT0}, s{sT1}
    s_add_u32 s{sT0}, s{sT0}, {W_ML + 32}
    s_mov_b64 exec, 1
    s_waitcnt vmcnt(0)
    buffer_store_dword v30, v30, s[{SRD_WS}:{SRD_WS + 3}], s{sT0} offen sc1
    s_mov_b64 exec, -1
    s_cmp_lg_u32 s{sMK}, 0
    s_cbranch_scc1 L_snd
    L_nosend:
    s_cmp_eq_u32 s{sDN}, 0
    s_cbranch_scc1 L_noplan
    s_add_u32 s{sT0}, s{sD0}, s{sDN}
    v_cmp_gt_u32 vcc, s{sT0}, v14
    v_cmp_lt_u32 s[{sT2}:{sT3}], s{sD0}, v17   ; D0 < R end
    s_and_b64 vcc, vcc, s[{sT2}:{sT3}]
    v_cmp_lt_u32 s[{sT2}:{sT3}], 0, v12
    s_and_b64 vcc, vcc, s[{sT2}:{sT3}]
    s_and_b32 s{sMK}, vcc_lo, 0xff
    s_lshl_b32 s{sT0}, s{sXC}, 9
    v_add_u32 v29, s{sT0}, v18
    L_col:
    s_ff1_i32_b32 s{sJ}, s{sMK}
    s_lshl_b32 s{sT0}, 1, s{sJ}
    s_xor_b32 s{sMK}, s{sMK}, s{sT0}
    s_lshl_b32 s{sT0}, s2, 7
    s_lshl_b32 s{sT1}, s{sJ}, 2
    s_add_u32 s{sT0}, s{sT0}, s{sT1}
    s_add_u32 s{sT0}, s{sT0}, {W_ML + 32}
    """)
    poll([f"buffer_load_dword v19, v30, s[{SRD_WS}:{SRD_WS + 3}], s{sT0} offen sc1"], [19], "in", sleep=8)
    A(f"""
    s_lshl_b32 s{sT0}, s2, 12
    s_lshl_b32 s{sT1}, s{sJ}, 9
    s_add_u32 s{sT0}, s{sT0}, s{sT1}
    s_add_u32 s{sT0}, s{sT0}, {W_O}
    buffer_load_dwordx4 v[20:23], v18, s[{SRD_WS}:{SRD_WS + 3}], s{sT0} offen sc1
    s_waitcnt vmcnt(0)
    s_mov_b32 exec_hi, 0
    ds_add_f32 v29, v20 offset:{L_ACC}
    ds_add_f32 v29, v21 offset:{L_ACC + 4}
    ds_add_f32 v29, v22 offset:{L_ACC + 8}
    ds_add_f32 v29, v23 offset:{L_ACC + 12}
    s_mov_b64 exec, -1
    s_cmp_lg_u32 s{sMK}, 0
    s_waitcnt lgkmcnt(0)
    s_cbranch_scc1 L_col
    L_noplan:
    s_waitcnt lgkmcnt(0)
    """)
    A(f"""
    v_lshrrev_b32 v8, 2, v6                ; i>>2
    v_lshl_add_u32 v8, v5, 2, v8           ; row = 4g + (i>>2)
    v_mul_u32_u24 v8, {WO_P}, v8
    v_and_b32 v9, 3, v6
    v_lshl_add_u32 v8, v9, 3, v8
    s_lshl_b32 s{sT0}, s{sHW}, 7
    s_add_u32 s{sT0}, s{sT0}, {L_WO}
    v_add_u32 v40, s{sT0}, v8
    s_barrier
    """)
    stamp()
    stamp(3)
    A(f"""
    s_cmp_lg_u32 s{sHW}, 0
    s_cbranch_scc1 L_nopub
    s_lshl_b32 s{sT0}, s{sXC}, 9
    v_and_b32 v12, 31, v1
    v_lshl_add_u32 v12, v12, 4, s{sT0}
    ds_read_b128 v[8:11], v12 offset:{L_ACC}
    s_mov_b32 exec_lo, -1
    s_mov_b32 exec_hi, 0
    s_lshl_b32 s{sT0}, s2, 9
    s_add_u32 s{sT0}, s{sT0}, {W_OT}
    s_waitcnt lgkmcnt(0)
    buffer_store_dwordx4 v[8:11], v2, s[{SRD_WS}:{SRD_WS + 3}], s{sT0} offen sc1
    s_mov_b64 exec, -1
    L_nopub:
    v_and_b32 v12, 31, v1
    v_lshlrev_b32 v12, 4, v12
    s_lshl_b32 s{sT0}, s{sXC}, 9
    v_add_u32 v13, s{sT0}, v12
    ds_read_b128 v[16:19], v13 offset:{L_ACC}
    s_xor_b32 s{sT1}, s2, 8
    s_lshl_b32 s{sT1}, s{sT1}, 9
    s_add_u32 s{sT1}, s{sT1}, {W_OT}
    """)
    poll([f"buffer_load_dwordx4 v[8:11], v12, s[{SRD_WS}:{SRD_WS + 3}], s{sT1} offen sc1"], [8, 9, 10, 11], "o")
    A(f"""
    s_waitcnt lgkmcnt(0)
    v_add_f32 v8, v8, v16
    v_add_f32 v9, v9, v17
    v_add_f32 v10, v10, v18
    v_add_f32 v11, v11, v19
    v_cvt_pk_bf16_f32 v8, v8, v9
    v_cvt_pk_bf16_f32 v9, v10, v11
    v_lshrrev_b32 v12, 1, v12              ; q*8
    s_lshl_b32 s{sT0}, s{sHW}, 8
    v_add_u32 v12, s{sT0}, v12
    ds_write_b64 v12, v[8:9] offset:{L_OB}
    v_lshlrev_b32 v13, 3, v5
    v_add_u32 v13, s{sT0}, v13             ; OB + w'*256 + g*8
    s_waitcnt lgkmcnt(0)
    """)
    stamp()
    for s in range(4):
        A(f"ds_read_b64 v[{16 + 4 * s}:{17 + 4 * s}], v13 offset:{L_OB + 64 * s}")
        A(f"ds_read_b64 v[{18 + 4 * s}:{19 + 4 * s}], v13 offset:{L_OB + 64 * s + 32}")
    BF = (44, 48, 52, 32)
    D = 8
    for nt in range(4):
        for s in range(4):
            b = BF[s]
            A(f"ds_read_b64_tr_b16 v[{b}:{b + 1}], v40 offset:{32 * s * WO_P + 32 * nt}")
            A(f"ds_read_b64_tr_b16 v[{b + 2}:{b + 3}], v40 offset:{(32 * s + 16) * WO_P + 32 * nt}")
        for s in range(4):
            b = BF[s]
            A(f"s_waitcnt lgkmcnt({6 - 2 * s})")
            A(f"v_mfma_f32_16x16x32_bf16 v[8:11], v[{16 + 4 * s}:{19 + 4 * s}], v[{b}:{b + 3}], {'0' if s == 0 else 'v[8:11]'}")
        A(f"v_mov_b32_dpp v36, v8 quad_perm:[0,1,2,3] row_mask:0x{1 << nt:x} bank_mask:0xf")
    A(f"""
    s_lshl_b32 s{sT0}, s{sLIST}, 10
    s_lshl_b32 s{sT1}, s{sHW}, 8
    s_add_u32 s{sT0}, s{sT0}, s{sT1}
    s_add_u32 s{sT0}, s{sT0}, {W_Y}
    v_lshlrev_b32 v12, 2, v1
    buffer_store_dword v36, v12, s[{SRD_WS}:{SRD_WS + 3}], s{sT0} offen sc1
    """)
    stamp()
    stamp(3)
    A(f"""
    s_cmp_lg_u32 s{sXC}, 0
    s_cbranch_scc1 L_fin
    """)
    A(f"""
    s_lshr_b32 s{sT0}, s{sR}, 3
    s_lshl_b32 s{sT0}, s{sT0}, 16          ; b*32*2048
    s_and_b32 s{sT1}, s{sR}, 7
    s_lshl_b32 s{sT1}, s{sT1}, 8
    s_add_u32 s{sT0}, s{sT0}, s{sT1}
    s_lshl_b32 s{sT1}, s{sHW}, 14          ; 8 w' * 2048
    s_add_u32 s{sT0}, s{sT0}, s{sT1}
    s_add_u32 s{sT0}, s{sT0}, {W_Y}
    s_add_u32 s{sT1}, s{sT0}, 8192
    v_lshlrev_b32 v12, 11, v5
    v_lshl_add_u32 v12, v6, 4, v12
    """)
    poll([f"buffer_load_dwordx4 v[16:19], v12, s[{SRD_WS}:{SRD_WS + 3}], s{sT0} offen sc1",
          f"buffer_load_dwordx4 v[20:23], v12, s[{SRD_WS}:{SRD_WS + 3}], s{sT1} offen sc1"], list(range(16, 24)), "y")
    stamp()
    stamp(3)
    A(f"""
    v_add_f32 v16, v16, v20
    v_add_f32 v17, v17, v21
    v_add_f32 v18, v18, v22
    v_add_f32 v19, v19, v23
    v_permlane16_swap_b32 v16, v17
    v_permlane16_swap_b32 v18, v19
    v_add_f32 v16, v16, v17
    v_add_f32 v18, v18, v19
    v_permlane32_swap_b32 v16, v18
    v_add_f32 v16, v16, v18
    v_lshlrev_b32 v12, 4, v6
    v_lshl_add_u32 v12, v5, 2, v12
    s_lshl_b32 s{sT0}, s{sHW}, 8
    v_add_u32 v12, s{sT0}, v12
    ds_write_b32 v12, v16 offset:{L_RED}
    v_and_b32 v12, 31, v1
    v_lshlrev_b32 v13, 3, v12
    s_waitcnt lgkmcnt(0)
    s_barrier
    s_cmp_lg_u32 s{sHW}, 0
    s_cbranch_scc1 L_not2
    ds_read_b64 v[16:17], v13 offset:{L_RED}
    ds_read_b64 v[18:19], v13 offset:{L_RED + 256}
    ds_read_b64 v[20:21], v13 offset:{L_RED + 512}
    ds_read_b64 v[22:23], v13 offset:{L_RED + 768}
    v_lshlrev_b32 v24, 16, v{XR}
    v_and_b32 v25, s{sMASK}, v{XR}
    s_waitcnt lgkmcnt(0)
    v_add_f32 v16, v16, v18
    v_add_f32 v17, v17, v19
    v_add_f32 v20, v20, v22
    v_add_f32 v21, v21, v23
    v_add_f32 v16, v16, v20
    v_add_f32 v17, v17, v21
    v_cvt_pk_bf16_f32 v16, v16, v17
    v_lshlrev_b32 v17, 16, v16
    v_and_b32 v18, s{sMASK}, v16
    v_add_f32 v17, v17, v24
    v_add_f32 v18, v18, v25
    v_cvt_pk_bf16_f32 v16, v17, v18
    v_lshlrev_b32 v12, 2, v12
    s_lshl_b32 s{sT0}, s{sR}, 7
    s_add_u32 s{sT0}, s{sT0}, {W_H}
    s_mov_b32 exec_lo, -1
    s_mov_b32 exec_hi, 0
    """)

    def pub_store(ins):
        if local:
            lab[0] += 1
            A(f"""
            s_cmp_eq_u32 s{sLOCAL}, 1
            s_cbranch_scc1 L_ls{lab[0]}
            {chr(10).join(i + ' sc1' for i in ins)}
            s_branch L_le{lab[0]}
            L_ls{lab[0]}:
            {chr(10).join(ins)}
            L_le{lab[0]}:
            """)
        else:
            for i in ins:
                A(i + " sc1")

    pub_store([f"buffer_store_dword v16, v12, s[{SRD_WS}:{SRD_WS + 3}], s{sT0} offen"])
    A(f"""
    s_mov_b64 exec, -1
    L_not2:
    s_lshl_b32 s{sT0}, s{sHW}, 10
    s_add_u32 s{sT0}, s{sT0}, {W_H}
    """)
    poll([f"buffer_load_dwordx4 v[8:11], v2, s[{SRD_WS}:{SRD_WS + 3}], s{sT0} offen sc1"], [8, 9, 10, 11], "h")
    stamp()
    stamp(3)
    A(f"""
    s_lshl_b32 s{sT0}, s{sHW}, 10
    v_add_u32 v12, s{sT0}, v2
    ds_write_b128 v12, v[8:11] offset:{L_HR}
    """)
    layernorm(8, 16, 24)
    stamp(3)
    A(f"""
    s_cmp_ge_u32 s{sR}, 28
    s_cbranch_scc1 L_t4
    s_mul_i32 s{sT0}, s{sHW}, {HN_P}
    v_add_u32 v12, s{sT0}, v2
    ds_write_b128 v12, v[8:11] offset:{L_HN}
    v_and_b32 v13, 3, v6
    v_mul_u32_u24 v57, {HHL_P}, v13
    v_lshl_add_u32 v57, v5, 3, v57
    v_add_u32 v57, {L_HHL}, v57
    v_mul_u32_u24 v13, {HN_P}, v13
    v_lshl_add_u32 v13, v5, 3, v13
    s_lshl_b32 s{sT0}, s{sHW}, 8
    s_add_u32 s{sT0}, s{sT0}, {L_HN}
    v_add_u32 v56, s{sT0}, v13
    s_waitcnt lgkmcnt(0)
    s_barrier
    """)
    stamp(3)
    AF, AC = 8, 24
    for s4 in range(4):
        A(f"ds_read2_b64 v[{AF + 4 * s4}:{AF + 4 * s4 + 3}], v56 offset0:{8 * s4} offset1:{8 * s4 + 4}")
    for s4 in range(4):
        A(f"s_waitcnt lgkmcnt(0)" if stamps == 3 else f"s_waitcnt lgkmcnt({3 - s4})")
        for m in range(2):
            for nt in range(4):
                d = AC + 16 * m + 4 * nt
                f = F1 + 16 * (4 * m + s4) + 4 * nt
                A(f"v_mfma_f32_16x16x32_bf16 v[{d}:{d + 3}], v[{AF + 4 * s4}:{AF + 4 * s4 + 3}], v[{f}:{f + 3}], {'0' if s4 == 0 else f'v[{d}:{d + 3}]'}")
    A(f"""
    s_lshl_b32 s{sT0}, s{sHW}, 11
    v_lshlrev_b32 v12, 4, v6
    v_add_u32 v12, s{sT0}, v12
    s_mov_b64 exec, 0xffff
    """)
    stamp(3)
    for T_ in range(8):
        A(f"ds_write_b128 v12, v[{AC + 4 * T_}:{AC + 4 * T_ + 3}] offset:{L_RED1 + 256 * T_}")
    A(f"""
    s_mov_b64 exec, -1
    s_lshl_b32 s{sT0}, s{sHW}, 2
    v_add_u32 v12, s{sT0}, v2              ; f*16 + b*4
    s_mul_i32 s{sT1}, s{sHW}, {HHL_P}
    v_lshlrev_b32 v13, 1, v1
    v_add_u32 v13, s{sT1}, v13
    s_waitcnt lgkmcnt(0)
    s_barrier
    """)
    stamp(3)
    for w in range(4):
        A(f"ds_read_b32 v{16 + w}, v12 offset:{L_RED1 + 2048 * w}")
        A(f"ds_read_b32 v{20 + w}, v12 offset:{L_RED1 + 2048 * w + 1024}")
    A(f"""
    s_waitcnt lgkmcnt(0)
    v_add_f32 v16, v16, v17
    v_add_f32 v18, v18, v19
    v_add_f32 v20, v20, v21
    v_add_f32 v22, v22, v23
    v_add_f32 v16, v16, v18
    v_add_f32 v20, v20, v22
    v_cvt_pk_bf16_f32 v16, v16, v20
    v_lshlrev_b32 v17, 16, v16             ; g
    v_and_b32 v18, s{sMASK}, v16           ; u
    v_mul_f32 v17, 0xbfb8aa3b, v17
    v_exp_f32 v17, v17
    v_add_f32 v17, 1.0, v17
    v_rcp_f32 v19, v17
    v_fma_f32 v17, -v17, v19, 1.0
    v_fma_f32 v17, v17, v19, v19
    v_cvt_pk_bf16_f32 v17, v17, v17
    v_lshlrev_b32 v17, 16, v17
    v_mul_f32 v17, v17, v18
    v_cvt_pk_bf16_f32 v17, v17, v17
    ds_write_b16 v13, v17 offset:{L_HHL}
    s_waitcnt lgkmcnt(0)
    s_barrier
    ds_read2_b64 v[8:11], v57 offset0:0 offset1:4
    ds_read2_b64 v[12:15], v57 offset0:8 offset1:12
    """)
    stamp(3)
    for ks in range(2):
        A(f"s_waitcnt lgkmcnt(0)" if stamps == 3 else f"s_waitcnt lgkmcnt({1 - ks})")
        for nt in range(8):
            d = AC + 4 * nt
            f = F2 + 32 * ks + 4 * nt
            A(f"v_mfma_f32_16x16x32_bf16 v[{d}:{d + 3}], v[{8 + 4 * ks}:{11 + 4 * ks}], v[{f}:{f + 3}], {'0' if ks == 0 else f'v[{d}:{d + 3}]'}")
    A(f"""
    s_lshl_b32 s{sT0}, s{sR}, 13
    s_lshl_b32 s{sT1}, s{sHW}, 11
    s_add_u32 s{sT0}, s{sT0}, s{sT1}
    s_add_u32 s{sT0}, s{sT0}, {W_PO}
    v_lshlrev_b32 v12, 4, v6
    s_mov_b64 exec, 0xffff
    """)
    pub_store([f"buffer_store_dwordx4 v[{AC + 4 * nt}:{AC + 4 * nt + 3}], v12, s[{SRD_WS}:{SRD_WS + 3}], s{sT0} offen offset:{256 * nt}" for nt in range(8)])
    A("s_mov_b64 exec, -1")
    A.label("L_t4")
    stamp()
    stamp(3)
    A(f"""
    s_lshl_b32 s{sT0}, s{sHW}, 16
    s_lshl_b32 s{sT1}, s{sR}, 8
    s_add_u32 s{sT0}, s{sT0}, s{sT1}
    s_add_u32 s{sT0}, s{sT0}, {W_PO}
    s_add_u32 s{sT1}, s{sT0}, 32768
    s_cmp_eq_u32 s{sHW}, 3
    s_cselect_b32 s{sT1}, s{sT0}, s{sT1}
    s_cselect_b32 s{sCNT}, 0, 1.0
    v_lshlrev_b32 v12, 13, v5
    v_lshl_add_u32 v12, v6, 4, v12
    """)
    poll([f"buffer_load_dwordx4 v[16:19], v12, s[{SRD_WS}:{SRD_WS + 3}], s{sT0} offen sc1",
          f"buffer_load_dwordx4 v[20:23], v12, s[{SRD_WS}:{SRD_WS + 3}], s{sT1} offen sc1"], list(range(16, 24)), "po")
    stamp()
    A(f"""
    v_fma_f32 v16, v20, s{sCNT}, v16
    v_fma_f32 v17, v21, s{sCNT}, v17
    v_fma_f32 v18, v22, s{sCNT}, v18
    v_fma_f32 v19, v23, s{sCNT}, v19
    v_permlane16_swap_b32 v16, v17
    v_permlane16_swap_b32 v18, v19
    v_add_f32 v16, v16, v17
    v_add_f32 v18, v18, v19
    v_permlane32_swap_b32 v16, v18
    v_add_f32 v16, v16, v18
    s_lshl_b32 s{sT0}, s{sHW}, 8
    v_lshlrev_b32 v12, 2, v1
    v_add_u32 v13, s{sT0}, v12
    ds_write_b32 v13, v16 offset:{L_RED + 1024}
    v_lshlrev_b32 v13, 10, v5
    v_lshl_add_u32 v13, v6, 1, v13
    s_lshl_b32 s{sT0}, s{sR}, 5
    v_add_u32 v13, s{sT0}, v13             ; b*1024 + (16t+n)*2
    s_waitcnt lgkmcnt(0)
    s_barrier
    s_cmp_lg_u32 s{sHW}, 0
    s_cbranch_scc1 L_fin
    ds_read_b32 v16, v12 offset:{L_RED + 1024}
    ds_read_b32 v17, v12 offset:{L_RED + 1024 + 256}
    ds_read_b32 v18, v12 offset:{L_RED + 1024 + 512}
    ds_read_b32 v19, v12 offset:{L_RED + 1024 + 768}
    ds_read_u16 v20, v13 offset:{L_HR}
    s_waitcnt lgkmcnt(0)
    v_add_f32 v16, v16, v17
    v_add_f32 v18, v18, v19
    v_add_f32 v16, v16, v18
    v_cvt_pk_bf16_f32 v16, v16, v16
    v_lshlrev_b32 v16, 16, v16
    v_lshlrev_b32 v20, 16, v20
    v_add_f32 v16, v16, v20
    v_cvt_pk_bf16_f32 v16, v16, v16
    global_store_short v13, v16, s[{sOUT}:{sOUT + 1}]
    L_fin:
    """)
    if stamps:
        stamp(0)
        A(f"""
        s_cmp_lg_u32 s{sHW}, 0
        s_cbranch_scc1 L_end
        s_waitcnt lgkmcnt(0)
        s_lshl_b32 s{sT0}, s2, 7
        s_add_u32 s{sT0}, s{sT0}, {STAMP_OFF}
        v_mov_b32 v12, s{sT0}
        s_mov_b64 exec, 1
        """)
        A(f"s_getreg_b32 s{sT1}, hwreg(HW_REG_XCC_ID)")
        A(f"v_mov_b32 v8, s{sT1}")
        A(f"global_store_dword v12, v8, s[{sWS}:{sWS + 1}] offset:120")
        A("s_nop 1")
        for i in range(nst[0]):
            A(f"v_mov_b32 v8, s{sST + 2 * i}")
            A(f"v_mov_b32 v9, s{sST + 2 * i + 1}")
            A(f"global_store_dwordx2 v12, v[8:9], s[{sWS}:{sWS + 1}] offset:{8 * i}")
            A("s_nop 1")
    A.label("L_end")
    body, npad = A.render()
    txt = HEAD + f"""; Override launch geometry by editing the next line (default: block=256,
; grid=ceil(out_elems/256), lds=0). Harness parses it; keep it on one line.
; @launch grid=(256,1,1) block=(512,1,1) lds={LDS_BYTES}
.amdgcn_target "amdgcn-amd-amdhsa--gfx950"
.text
.globl {KN}
.p2align 8
.type {KN},@function
{KN}:
{body}
    s_endpgm
.section .rodata,"a"
.p2align 6
.amdhsa_kernel {KN}
  .amdhsa_next_free_vgpr 256
  .amdhsa_next_free_sgpr 102
  .amdhsa_accum_offset 256
  .amdhsa_group_segment_fixed_size 0
  .amdhsa_kernarg_size 96
  .amdhsa_float_denorm_mode_32 3
  .amdhsa_user_sgpr_count 2
  .amdhsa_user_sgpr_kernarg_segment_ptr 1
  .amdhsa_system_sgpr_workgroup_id_x 1
.end_amdhsa_kernel
"""
    return txt, npad, nst[0]


if __name__ == "__main__":
    out = sys.argv[1]
    kv = dict(x.split("=") for x in sys.argv[2:])
    txt, npad, ns = gen(DIST=int(kv.get("dist", 2)), stamps=int(kv.get("stamps", 0)), local=bool(int(kv.get("local", 0))), wnt=kv.get("wnt", "nt"), qnt=kv.get("qnt", ""), fill=int(kv.get("fill", 2)), prio=int(kv.get("prio", 0)), deep=int(kv.get("deep", 0)), prog=int(kv.get("prog", 0)), LEAD=int(kv.get("lead", 8)), b0=int(kv.get("b0", 0)), skip=kv.get("skip", ""), rowt=float(kv.get("rowt", 109.0)), GMAX=int(kv.get("gmax", 8)))
    open(out, "w").write(txt)
    print(out, "pads", npad, "stamps", ns, "bytes", len(txt), "lds", LDS_BYTES)
```

```python
import sys
from asmlib import Asm

KN = "sequential_preLN__mha_block_cached__glu_gated_glu__decode_kernel"
HEAD = open("sequential_preLN__mha_block_cached__glu_gated_glu__decode.s.ref").read().split("; Override launch")[0]

L_SC = 0
L_XN = 16384
L_QP = L_XN + 2048
L_ACC = L_QP + 2048
L_MISC = L_ACC + 4096
L_RED = L_MISC + 256
L_OB = L_RED + 2048
OB_P = 272
L_HN = L_OB + 1280
HN_P = 1088
L_HR = L_HN + 4 * HN_P
L_WO = L_HR + 4096
WO_P = 160
L_STG = L_WO + 128 * WO_P
STG_SZ = 9216
L_RED1 = L_SC
L_HHL = L_SC + 8192
HHL_P = 144
L_TAB = L_STG + 4 * STG_SZ
L_EXT = L_TAB + 1024
L_END = L_EXT + 4096
LDS_BYTES = (L_END + 255) // 256 * 256

W_ML = 0x000000
W_CNT = 0x010000
W_XID = 0x020000
W_Y = 0x030000
W_H = 0x070000
W_HH = 0x072000
W_O = 0x080000
W_PO = 0x180000
W_P = 0x200000
W_QP = 0x340000
W_OT = 0x300000
W_TM = 0x028000
WS_SIZE = 0x800000
STAMP_OFF = 512 << 20

SCALE = 0x3DB504F3
LOG2E = 0x3FB8AA3B
EPS = 0x3727C5AC
SPIN = 40000

sX, sK, sV, sWQ, sWO, sWG, sWU, sWD, sOUT, sDBG, sWS = 4, 6, 8, 10, 12, 16, 18, 20, 22, 24, 26
SRD_K, SRD_V, SRD_WS, SRD_T = 28, 32, 36, 40
sWAVE, sXC, sR, sHL, sH, sB, sHALF, sLIST = 44, 45, 46, 47, 48, 49, 50, 51
sT0, sT1, sT2, sT3 = 52, 53, 54, 55
sKOFF, sVOFF, sCNT = 56, 57, 58
sSCALE, sLOG2E, sMASK, sSELLO, sSELHI = 59, 60, 61, 62, 63
sHW = 64
sSPIN = 65
sTAIL = 66
sEX = 68
sST = 72
sLOCAL = 70
sTS = 98
sLOCH = 3


def gen(DIST=2, stamps=False, local=False, wnt='nt', qnt='', fill=2, prio=0, deep=0, prog=0, LEAD=8, b0=0, skip='', rowt=109.0, GMAX=8, asleep=0, qto=1200, psl=8, apre=0, drow=0, warm=0):
    import struct
    ROWRATE = struct.unpack('<I', struct.pack('<f', 1.0 / rowt))[0]
    WNT = wnt
    A = Asm()
    nst = [0]

    def stamp(kind=1):
        if stamps and (stamps == kind or kind == 0):
            A(f"s_memrealtime s[{sST + 2 * nst[0]}:{sST + 2 * nst[0] + 1}]")
            nst[0] += 1

    def wave_allreduce(op, v, t):
        for r in (8, 4, 2, 1):
            A(f"{op}_dpp v{v}, v{v}, v{v} row_ror:{r} row_mask:0xf bank_mask:0xf")
        A(f"v_mov_b32 v{t}, v{v}")
        A(f"v_permlane16_swap_b32 v{v}, v{t}")
        A(f"{op} v{v}, v{v}, v{t}")
        A(f"v_mov_b32 v{t}, v{v}")
        A(f"v_permlane32_swap_b32 v{v}, v{t}")
        A(f"{op} v{v}, v{v}, v{t}")

    def reduce8(a):
        for j in (0, 2, 4, 6):
            A(f"v_permlane16_swap_b32 v{a + j}, v{a + j + 1}")
        for j in (0, 2, 4, 6):
            A(f"v_add_f32 v{a + j}, v{a + j}, v{a + j + 1}")
        for j in (0, 4):
            A(f"v_permlane32_swap_b32 v{a + j}, v{a + j + 2}")
        for j in (0, 4):
            A(f"v_add_f32 v{a + j}, v{a + j}, v{a + j + 2}")

    def rbf(v):
        A(f"v_cvt_pk_bf16_f32 v{v}, v{v}, v{v}")
        A(f"v_lshlrev_b32 v{v}, 16, v{v}")

    def layernorm(pk, f, t):
        for j in range(4):
            A(f"v_lshlrev_b32 v{f + 2 * j}, 16, v{pk + j}")
            A(f"v_and_b32 v{f + 2 * j + 1}, s{sMASK}, v{pk + j}")
        A(f"v_add_f32 v{t}, v{f}, v{f + 1}")
        for j in range(2, 8):
            A(f"v_add_f32 v{t}, v{t}, v{f + j}")
        wave_allreduce("v_add_f32", t, t + 1)
        A(f"v_mul_f32 v{t}, 0x3b000000, v{t}")
        A(f"v_sub_f32 v{t + 1}, v{f}, v{t}")
        A(f"v_mul_f32 v{t + 2}, v{t + 1}, v{t + 1}")
        for j in range(1, 8):
            A(f"v_sub_f32 v{t + 1}, v{f + j}, v{t}")
            A(f"v_fmac_f32 v{t + 2}, v{t + 1}, v{t + 1}")
        wave_allreduce("v_add_f32", t + 2, t + 1)
        A(f"v_mul_f32 v{t + 2}, 0x3b000000, v{t + 2}")
        rbf(t)
        rbf(t + 2)
        A(f"v_add_f32 v{t + 2}, 0x{EPS:08x}, v{t + 2}")
        rbf(t + 2)
        A(f"v_sqrt_f32 v{t + 2}, v{t + 2}")
        rbf(t + 2)
        A(f"v_rcp_f32 v{t + 3}, v{t + 2}")
        for j in range(0, 8, 2):
            A(f"v_sub_f32 v{f + j}, v{f + j}, v{t}")
            A(f"v_sub_f32 v{f + j + 1}, v{f + j + 1}, v{t}")
            A(f"v_cvt_pk_bf16_f32 v{t + 1}, v{f + j}, v{f + j + 1}")
            A(f"v_lshlrev_b32 v{f + j}, 16, v{t + 1}")
            A(f"v_and_b32 v{f + j + 1}, s{sMASK}, v{t + 1}")
        for j in range(8):
            A(f"v_mul_f32 v{t + 4}, v{f + j}, v{t + 3}")
            A(f"v_fma_f32 v{t + 5}, -v{t + 4}, v{t + 2}, v{f + j}")
            A(f"v_fma_f32 v{f + j}, v{t + 5}, v{t + 3}, v{t + 4}")
        for j in range(0, 8, 2):
            A(f"v_cvt_pk_bf16_f32 v{pk + j // 2}, v{f + j}, v{f + j + 1}")
        for j in range(4):
            A(f"v_lshlrev_b32 v{f + 2 * j}, 16, v{pk + j}")
            A(f"v_and_b32 v{f + 2 * j + 1}, s{sMASK}, v{pk + j}")

    lab = [0]

    def poll(loads, regs, name, sleep=0):
        lab[0] += 1
        L = f"L_poll{lab[0]}_{name}"
        A(f"s_mov_b32 s{sSPIN}, 0")
        A.label(L)
        if sleep:
            A(f"s_sleep {sleep}")
        for l in loads:
            A(l)
        A("s_waitcnt vmcnt(0)")
        A(f"v_cmp_eq_u32 vcc, -1, v{regs[0]}")
        for r in regs[1:]:
            A(f"v_cmp_eq_u32 s[{sT2}:{sT3}], -1, v{r}")
            A(f"s_or_b64 vcc, vcc, s[{sT2}:{sT3}]")
        A(f"s_add_u32 s{sSPIN}, s{sSPIN}, 1")
        A(f"s_cmp_gt_u32 s{sSPIN}, {SPIN}")
        A(f"s_cbranch_scc1 {L}_x")
        A("s_cmp_lg_u64 vcc, 0")
        A(f"s_cbranch_scc1 {L}")
        A.label(L + "_x")

    def pub_store(ins, flag=None):
        flag = sLOCAL if flag is None else flag
        if local:
            lab[0] += 1
            A(f"""
            s_cmp_eq_u32 s{flag}, 1
            s_cbranch_scc1 L_ls{lab[0]}
            {chr(10).join(i + ' sc1' for i in ins)}
            s_branch L_le{lab[0]}
            L_ls{lab[0]}:
            s_nop 3
            {chr(10).join(ins)}
            L_le{lab[0]}:
            """)
        else:
            for i in ins:
                A(i + " sc1")

    A(f"""
    s_cmp_ge_u32 s2, 256
    s_cbranch_scc1 L_end
    s_load_dwordx16 s[4:19], s[0:1], 0
    s_load_dwordx8 s[20:27], s[0:1], 64
    v_lshrrev_b32 v3, 6, v0
    v_and_b32 v1, 63, v0
    v_readfirstlane_b32 s{sWAVE}, v3
    v_lshlrev_b32 v2, 4, v1
    s_and_b32 s{sXC}, s2, 7
    s_lshr_b32 s{sR}, s2, 3
    s_lshr_b32 s{sHL}, s{sR}, 3
    s_lshl_b32 s{sH}, s{sHL}, 3
    s_add_u32 s{sH}, s{sH}, s{sXC}
    s_bfe_u32 s{sB}, s{sR}, 0x20001
    s_and_b32 s{sHALF}, s{sR}, 1
    s_lshl_b32 s{sLIST}, s{sB}, 5
    s_add_u32 s{sLIST}, s{sLIST}, s{sH}
    s_lshl_b32 s{sLIST}, s{sLIST}, 1
    s_add_u32 s{sLIST}, s{sLIST}, s{sHALF}
    s_lshl_b32 s{sT0}, s{sLIST}, 20
    s_mov_b32 s{sSCALE}, 0x{SCALE:08x}
    s_mov_b32 s{sLOG2E}, 0x{LOG2E:08x}
    s_mov_b32 s{sMASK}, 0xffff0000
    s_mov_b32 s{sSELLO}, 0x05040100
    s_mov_b32 s{sSELHI}, 0x07060302
    s_mov_b32 s{SRD_K + 2}, 0x100000
    s_mov_b32 s{SRD_K + 3}, 0x20000
    s_mov_b32 s{SRD_V + 2}, 0xf00000
    s_mov_b32 s{SRD_V + 3}, 0x20000
    s_mov_b32 s{SRD_WS + 2}, 0x{WS_SIZE:x}
    s_mov_b32 s{SRD_WS + 3}, 0x20000
    s_mov_b32 s{SRD_T + 3}, 0x20000
    v_bfe_u32 v5, v0, 4, 2          ; g
    v_and_b32 v6, 15, v0            ; c
    """)
    if stamps:
        for i in range(1, 14):
            A(f"s_mov_b64 s[{sST + 2 * i}:{sST + 2 * i + 1}], 0")
    stamp(0)
    A(f"""
    s_waitcnt lgkmcnt(0)
    s_add_u32 s{SRD_K}, s{sK}, s{sT0}
    s_addc_u32 s{SRD_K + 1}, s{sK + 1}, 0
    s_lshl_b32 s{sT1}, s{sXC}, 21
    s_sub_u32 s{sT0}, s{sT0}, s{sT1}
    s_add_u32 s{SRD_V}, s{sV}, s{sT0}
    s_addc_u32 s{SRD_V + 1}, s{sV + 1}, 0
    s_mov_b32 s{SRD_WS}, s{sWS}
    s_mov_b32 s{SRD_WS + 1}, s{sWS + 1}
    s_cmp_ge_u32 s{sWAVE}, 4
    s_cbranch_scc1 L_helper
    """)

    RING = 128
    Q = 8
    T = 12
    CA, CB = 16, 17
    TM = 18
    MX = 24
    ACC = 32
    PB = (40, 48)
    PLO = 56
    NH = 64
    issued = []
    nxt = [0]

    def slot(j):
        if deep and 8 <= j < 12:
            return 64 + 16 * (j - 8)
        if deep and 12 <= j < 16:
            return RING + 16 * (j - 12)
        return RING + 16 * (j % 8)

    landed = [0]

    def issue1():
        i = nxt[0]
        if i >= 8 * NH:
            return
        j, k = i // 4, i % 4
        srd, so = (SRD_K, sKOFF) if j < NH else (SRD_V, sVOFF)
        r = slot(j)
        A(f"buffer_load_dwordx4 v[{r + 4 * k}:{r + 4 * k + 3}], v2, s[{srd}:{srd + 3}], s{so} offen offset:{1024 * k} nt")
        if k == 3:
            A(f"s_add_u32 s{so}, s{so}, {4096 if j % 2 == 0 else 32768 - 4096}")
        nxt[0] += 1

    def issue_upto(last):
        while nxt[0] <= min(last, 8 * NH - 1):
            issue1()

    def wait_half(j):
        need = 4 * j + 4
        assert nxt[0] >= need
        A(f"s_waitcnt vmcnt({nxt[0] - need})")

    def pstamp():
        if prog:
            A(f"""
            s_memrealtime s[98:99]
            s_waitcnt lgkmcnt(0)
            s_mov_b32 m0, s100
            s_nop 0
            v_writelane_b32 v30, s98, m0
            s_add_u32 s100, s100, 1
            """)

    def kcompute(j):
        if j % 4 == 0:
            pstamp()
        r = slot(j)
        for q in range(4):
            for i in range(4):
                if q == 0:
                    A(f"v_dot2_f32_bf16 v{T + i}, v{r + 4 * i}, v{Q}, 0")
                else:
                    A(f"v_dot2_f32_bf16 v{T + i}, v{r + 4 * i + q}, v{Q + q}, v{T + i}")
        for ro in (8, 4, 2):
            for i in range(4):
                A(f"v_add_f32_dpp v{T + i}, v{T + i}, v{T + i} row_ror:{ro} row_mask:0xf bank_mask:0xf")
        C = CA if j % 2 == 0 else CB
        for i in range(4):
            A(f"v_add_f32_dpp v{C}, v{T + i}, v{T + i} row_ror:1 row_mask:0xf bank_mask:0x{1 << i:x}")
        if j % 2 == 1:
            off = ((j % 8) // 2) * 512
            A(f"""
            v_cvt_pk_bf16_f32 v{TM}, v{CA}, v{CB}
            v_lshlrev_b32 v{TM + 1}, 16, v{TM}
            v_and_b32 v{TM + 2}, s{sMASK}, v{TM}
            v_mul_f32 v{TM + 1}, s{sSCALE}, v{TM + 1}
            v_mul_f32 v{TM + 2}, s{sSCALE}, v{TM + 2}
            v_cvt_pk_bf16_f32 v{TM}, v{TM + 1}, v{TM + 2}
            v_lshlrev_b32 v{TM + 1}, 16, v{TM}
            v_and_b32 v{TM + 2}, s{sMASK}, v{TM}
            ds_write_b32 v4, v{TM + 1} offset:{off}
            ds_write_b32 v4, v{TM + 2} offset:{off + 16}
            v_max3_f32 v{MX}, v{MX}, v{TM + 1}, v{TM + 2}
            """)
            if j % 8 == 7:
                A("v_add_u32 v4, 2048, v4")

    def pread(chunk):
        pb = PB[chunk % 2]
        off = (chunk % 4) * 512
        A(f"ds_read_b128 v[{pb}:{pb + 3}], v3 offset:{off}")
        A(f"ds_read_b128 v[{pb + 4}:{pb + 7}], v3 offset:{off + 16}")

    def vcompute(j):
        if j % 4 == 0:
            pstamp()
        r = RING + 16 * (j % 8)
        pb = PB[(j // 2) % 2] + 4 * (j % 2)
        for i in range(4):
            A(f"v_lshrrev_b32 v{PLO + (i & 1)}, 16, v{pb + i}")
            for q in range(4):
                A(f"v_dot2c_f32_bf16 v{ACC + 2 * q + 1}, v{r + 4 * i + q}, v{pb + i}")
            for q in range(4):
                A(f"v_dot2c_f32_bf16 v{ACC + 2 * q}, v{r + 4 * i + q}, v{PLO + (i & 1)}")

    A("s_mov_b32 s100, 0")
    A("v_mov_b32 v30, 0")
    A(f"s_lshl_b32 s{sKOFF}, s{sWAVE}, 13")
    A(f"s_add_u32 s{sVOFF}, s{sKOFF}, s{sT1}")
    issue_upto(7)
    A("s_barrier")
    for n in range(8, 48 if deep else 32):
        if fill:
            if n % 2 == 0:
                A(f"s_waitcnt vmcnt({fill - 2})")
        issue1()
    A(f"""
    s_lshl_b32 s{sT0}, s{sWAVE}, 7
    v_lshlrev_b32 v3, 5, v5
    v_add_u32 v3, s{sT0}, v3
    v_lshrrev_b32 v4, 2, v6
    v_lshlrev_b32 v4, 2, v4
    v_add_u32 v4, v3, v4
    v_lshlrev_b32 v7, 5, v6             ; c*32
    v_mov_b32 v{MX}, 0xff800000
    """)
    A("s_barrier")
    QT = 32
    for w in range(4):
        A(f"ds_read_b128 v[{QT + 8 * w}:{QT + 3 + 8 * w}], v7 offset:{L_QP + 512 * w}")
        A(f"ds_read_b128 v[{QT + 4 + 8 * w}:{QT + 7 + 8 * w}], v7 offset:{L_QP + 512 * w + 16}")
    A("s_waitcnt lgkmcnt(0)")
    for j in range(8):
        A(f"v_add_f32 v{QT + j}, v{QT + j}, v{QT + 8 + j}")
        A(f"v_add_f32 v{QT + 16 + j}, v{QT + 16 + j}, v{QT + 24 + j}")
    for j in range(8):
        A(f"v_add_f32 v{QT + j}, v{QT + j}, v{QT + 16 + j}")
    for j in range(4):
        A(f"v_cvt_pk_bf16_f32 v{Q + j}, v{QT + 2 * j}, v{QT + 1 + 2 * j}")
    for j in range(8):
        A(f"v_mov_b32 v{ACC + j}, 0")

    def kstep(j, lead):
        wait_half(j)
        issue_upto(min(4 * j + 3 + lead, 4 * j + 31))
        kcompute(j)

    first = 16 if deep else 8
    for j in range(first):
        if deep and j < 14:
            wait_half(j)
            kcompute(j)
            if j < 4:
                issue_upto(4 * (12 + j) + 3)
        else:
            kstep(j, LEAD)
    A(f"s_mov_b32 s{sCNT}, {5 if deep else 6}")
    A.label("L_kloop")
    d0 = nxt[0] - 4 * first
    for j in range(first, first + 8):
        kstep(j, LEAD)
    assert nxt[0] - 4 * first - 32 == d0
    A(f"s_sub_u32 s{sCNT}, s{sCNT}, 1")
    A(f"s_cmp_lg_u32 s{sCNT}, 0")
    A("s_cbranch_scc1 L_kloop")
    nxt[0] += 4 * (56 - first - 8)
    for j in range(56, 64):
        kstep(j, LEAD + 8 * (j - 55))
    issue_upto(4 * 72 - 1)
    for ro in (4, 8):
        A(f"v_max_f32_dpp v{MX}, v{MX}, v{MX} row_ror:{ro} row_mask:0xf bank_mask:0xf")
    A(f"""
    v_mov_b32 v{TM}, v{MX}
    v_permlane16_swap_b32 v{MX}, v{TM}
    v_max_f32 v{MX}, v{MX}, v{TM}
    v_mov_b32 v{TM}, v{MX}
    v_permlane32_swap_b32 v{MX}, v{TM}
    v_max_f32 v{MX}, v{MX}, v{TM}
    s_lshl_b32 s{sT0}, s{sWAVE}, 2
    v_mov_b32 v{TM}, s{sT0}
    ds_write_b32 v{TM}, v{MX} offset:{L_MISC}
    s_waitcnt lgkmcnt(0)
    """)

    def midphase_common(E, TT):
        A("s_barrier")
        A(f"""
        v_lshlrev_b32 v{TT}, 5, v0
        v_mov_b32 v{TT + 1}, 0
        ds_read_b128 v[{E}:{E + 3}], v{TT} offset:{L_SC}
        ds_read_b128 v[{E + 4}:{E + 7}], v{TT} offset:{L_SC + 16}
        ds_read_b128 v[{TT + 4}:{TT + 7}], v{TT + 1} offset:{L_MISC}
        s_waitcnt lgkmcnt(0)
        v_max_f32 v{TT + 4}, v{TT + 4}, v{TT + 5}
        v_max3_f32 v{TT + 4}, v{TT + 4}, v{TT + 6}, v{TT + 7}     ; m_loc
        """)
        for j in range(8):
            A(f"v_sub_f32 v{E + j}, v{E + j}, v{TT + 4}")
        for j in range(8):
            A(f"v_mul_f32 v{E + j}, s{sLOG2E}, v{E + j}")
        for j in range(8):
            A(f"v_exp_f32 v{E + j}, v{E + j}")
        A(f"v_add_f32 v{TT + 2}, v{E}, v{E + 1}")
        for j in range(2, 8):
            A(f"v_add_f32 v{TT + 2}, v{TT + 2}, v{E + j}")
        wave_allreduce("v_add_f32", TT + 2, TT + 3)
        A(f"""
        s_lshl_b32 s{sT0}, s{sWAVE}, 2
        v_mov_b32 v{TT + 3}, s{sT0}
        ds_write_b32 v{TT + 3}, v{TT + 2} offset:{L_MISC + 32}
        s_waitcnt lgkmcnt(0)
        s_barrier
        """)

    def midphase_end(E, TT):
        A("s_barrier")
        A(f"""
        ds_read_b32 v{TT + 2}, v{TT + 1} offset:{L_MISC + 64}
        s_waitcnt lgkmcnt(0)
        """)
        for j in range(8):
            A(f"v_mul_f32 v{E + j}, v{E + j}, v{TT + 2}")
        for j in range(0, 8, 2):
            A(f"v_cvt_pk_bf16_f32 v{TT + 3}, v{E + j}, v{E + j + 1}")
            A(f"v_lshlrev_b32 v{E + j}, 16, v{TT + 3}")
            A(f"v_and_b32 v{E + j + 1}, s{sMASK}, v{TT + 3}")
        A(f"""
        ds_write_b128 v{TT}, v[{E}:{E + 3}] offset:{L_SC}
        ds_write_b128 v{TT}, v[{E + 4}:{E + 7}] offset:{L_SC + 16}
        s_waitcnt lgkmcnt(0)
        s_barrier
        """)

    midphase_common(64, 72)
    midphase_end(64, 72)

    VE, VTA, VPA, VAD, VG = 60, 58, 59, 31, 64
    sNV, sNP, sNX, sLC, sAX, sW13 = 64, 66, 67, 68, 69, 70
    pread(0)
    A(f"""
    v_mov_b32 v{VTA}, {L_TAB}
    v_mov_b32 v{VG}, v3
    v_lshl_add_u32 v{VAD}, v5, 2, v7               ; (8c+g)*4
    s_mov_b32 s{sLC}, s{sXC}
    s_mov_b32 s{sAX}, s{sXC}
    s_lshl_b32 s{sW13}, s{sWAVE}, 13
    """)

    def vstep(jv):
        j = NH + jv
        if jv % 2 == 0:
            A("s_waitcnt lgkmcnt(0)")
        else:
            if jv % 8 == 7:
                A("v_add_u32 v3, 2048, v3")
            pread(jv // 2 + 1)
        wait_half(j)
        issue_upto(4 * j + 3 + 8)
        vcompute(jv)

    def vloads(r):
        for i in range(4):
            A(f"buffer_load_dwordx4 v[{r + 4 * i}:{r + 4 * i + 3}], v2, s[{SRD_V}:{SRD_V + 3}], s{sVOFF} offen offset:{1024 * i} nt")

    def flush():
        reduce8(ACC)
        A(f"""
        s_lshl_b32 s{sT0}, s{sAX}, 9
        v_add_u32 v{TM}, s{sT0}, v{VAD}
        ds_add_f32 v{TM}, v{ACC} offset:{L_ACC}
        ds_add_f32 v{TM}, v{ACC + 4} offset:{L_ACC + 16}
        """)

    def flushz(tag):
        A(f"""
        s_bitcmp1_b32 s{sLC}, 9
        s_cbranch_scc0 L_nodec{tag}
        v_mov_b32 v{TM + 1}, 1
        v_mov_b32 v{TM + 2}, 0
        ds_write_b32 v{TM + 2}, v{TM + 1} offset:{L_MISC + 148}
        s_and_b32 s{sLC}, s{sLC}, 7
        s_branch L_fzx{tag}
        L_nodec{tag}:
        """)
        flush()
        for j in range(8):
            A(f"v_mov_b32 v{ACC + j}, 0")
        A(f"""
        s_bitcmp1_b32 s{sLC}, 8
        s_cbranch_scc0 L_nosig{tag}
        v_mov_b32 v{TM + 1}, 1
        v_mov_b32 v{TM + 2}, 0
        s_mov_b64 exec, 1
        ds_add_u32 v{TM + 2}, v{TM + 1} offset:{L_MISC + 132}
        s_mov_b64 exec, -1
        L_nosig{tag}:
        s_and_b32 s{sLC}, s{sLC}, 7
        s_mov_b32 s{sAX}, s{sLC}
        L_fzx{tag}:
        """)

    for jv in range(8):
        vstep(jv)
    assert nxt[0] == 4 * (NH + 10), nxt
    A(f"ds_read_b128 v[{VE}:{VE + 3}], v{VTA}")
    for k in range(4):
        k1 = (k + 1) % 4
        A(f"""
        L_row{k}:
        s_waitcnt lgkmcnt(0)
        v_readfirstlane_b32 s{sNV}, v{VE}
        v_readfirstlane_b32 s{sNP}, v{VE + 1}
        v_readfirstlane_b32 s{sNX}, v{VE + 2}
        s_cmp_ge_u32 s{sNV}, -2
        s_cbranch_scc1 L_odd{k}
        v_add_u32 v{VTA}, 16, v{VTA}
        s_add_u32 s{sVOFF}, s{sNV}, s{sW13}
        v_add_u32 v{VPA}, s{sNP}, v{VG}
        ds_read_b128 v[{VE}:{VE + 3}], v{VTA}
        s_waitcnt vmcnt(4)
        """)
        vloads(RING + 32 * k1)
        A(f"""
        s_add_u32 s{sVOFF}, s{sVOFF}, 4096
        s_cmp_lg_u32 s{sLC}, s{sAX}
        s_cbranch_scc1 L_flush{k}
        L_fback{k}:
        """)
        vcompute(2 * k)
        pb = PB[(k + 1) % 2]
        A(f"ds_read_b128 v[{pb}:{pb + 3}], v{VPA}")
        A(f"ds_read_b128 v[{pb + 4}:{pb + 7}], v{VPA} offset:16")
        A("s_waitcnt vmcnt(4)")
        vloads(RING + 32 * k1 + 16)
        vcompute(2 * k + 1)
        A(f"s_mov_b32 s{sLC}, s{sNX}")
    A("s_branch L_row0")
    for k in range(4):
        A.label(f"L_flush{k}")
        A("s_nop 4")
        flushz(f"a{k}")
        A(f"s_branch L_fback{k}")
        A(f"""
        L_odd{k}:
        s_cmp_eq_u32 s{sNV}, -1
        s_cbranch_scc1 L_last{k}
        s_mov_b32 s{sSPIN}, 0
        L_pend{k}:
        ds_read_b128 v[{VE}:{VE + 3}], v{VTA}
        s_waitcnt lgkmcnt(0)
        v_readfirstlane_b32 s{sNV}, v{VE}
        s_add_u32 s{sSPIN}, s{sSPIN}, 1
        s_cmp_gt_u32 s{sSPIN}, {SPIN * 40}
        s_cbranch_scc1 L_last{k}
        s_cmp_eq_u32 s{sNV}, -2
        s_cbranch_scc1 L_pend{k}
        s_branch L_row{k}
        L_last{k}:
        s_cmp_eq_u32 s{sLC}, s{sAX}
        s_cbranch_scc1 L_last2{k}
        """)
        flushz(f"b{k}")
        A.label(f"L_last2{k}")
        A("s_waitcnt vmcnt(4)")
        vcompute(2 * k)
        A("s_waitcnt vmcnt(0)")
        vcompute(2 * k + 1)
        A("s_branch L_vdone")
    A.label("L_vdone")
    pstamp()
    if prog:
        A(f"""
        s_lshl_b32 s{sT0}, s2, 10
        s_lshl_b32 s{sT1}, s{sWAVE}, 8
        s_add_u32 s{sT0}, s{sT0}, s{sT1}
        s_add_u32 s{sT0}, s{sT0}, {STAMP_OFF + (1 << 20)}
        v_lshlrev_b32 v29, 2, v1
        v_add_u32 v29, s{sT0}, v29
        global_store_dword v29, v30, s[{sWS}:{sWS + 1}]
        """)
    A("s_nop 4")
    flush()
    A(f"""
    s_waitcnt lgkmcnt(0)
    s_barrier
    s_endpgm
    """)

    A.label("L_helper")
    W = 128
    if prio:
        A("s_setprio 3")
    stamp(2)
    L_XN4, L_QS = L_SC, L_SC + 8192
    C1, C2, DEC = L_MISC + 136, L_MISC + 140, L_MISC + 144

    def lds_spin(off, val, name, vz, vt):
        A(f"""
        s_mov_b32 s{sSPIN}, 0
        L_sp{name}:
        ds_read_b32 v{vt}, v{vz} offset:{off}
        s_waitcnt lgkmcnt(0)
        v_readfirstlane_b32 s{sT0}, v{vt}
        s_add_u32 s{sSPIN}, s{sSPIN}, 1
        s_cmp_gt_u32 s{sSPIN}, {SPIN * 40}
        s_cbranch_scc1 L_sp{name}_x
        s_cmp_lt_u32 s{sT0}, {val}
        s_cbranch_scc1 L_sp{name}
        L_sp{name}_x:
        """)

    A(f"""
    s_memrealtime s[{sTS}:{sTS + 1}]
    s_sub_u32 s{sHW}, s{sWAVE}, 4
    s_lshl_b32 s{sT0}, s{sHW}, 10
    v_add_u32 v7, s{sT0}, v2
    global_load_dwordx4 v[8:11], v7, s[{sX}:{sX + 1}]
    s_lshl_b32 s{sT0}, s{sH}, 8
    s_add_u32 s{SRD_T}, s{sWQ}, s{sT0}
    s_addc_u32 s{SRD_T + 1}, s{sWQ + 1}, 0
    s_sub_u32 s{SRD_T + 2}, 0x400000, s{sT0}
    s_cmp_lg_u32 s{sHALF}, 0
    s_cbranch_scc1 L_nopq
    s_lshl_b32 s{sT1}, s{sB}, 20
    s_lshl_b32 s{sT0}, s{sHW}, 18
    s_add_u32 s{sT1}, s{sT1}, s{sT0}       ; (128b + 32w')*8192
    v_lshlrev_b32 v7, 16, v5               ; 8g*8192
    v_lshl_add_u32 v7, v6, 4, v7
    """)
    for i in range(8):
        A(f"buffer_load_dwordx4 v[{W + 4 * i}:{W + 4 * i + 3}], v7, s[{SRD_T}:{SRD_T + 3}], s{sT1} offen nt")
        A(f"s_add_u32 s{sT1}, s{sT1}, 8192")
    A(f"""
    L_nopq:
    v_mov_b32 v12, 0
    v_mov_b32 v13, 0
    v_mov_b32 v14, 0
    v_mov_b32 v15, 0
    s_lshl_b32 s{sT0}, s{sHW}, 10
    v_add_u32 v16, s{sT0}, v2
    ds_write_b128 v16, v[12:15] offset:{L_ACC}
    ds_write_b128 v12, v[12:15] offset:{L_MISC + 128}
    ds_write_b128 v12, v[12:15] offset:{DEC}
    ds_write_b128 v2, v[12:15] offset:{L_QS}
    ds_write_b128 v2, v[12:15] offset:{L_QS + 1024}
    v_mov_b32 v63, 0
    s_waitcnt lgkmcnt(0)
    s_barrier
    s_cmp_lg_u32 s{sHALF}, 0
    s_cbranch_scc1 L_wx0
    s_waitcnt vmcnt(8)
    s_branch L_wx1
    L_wx0:
    s_waitcnt vmcnt(0)
    L_wx1:
    """)
    stamp(2)
    layernorm(8, 16, 24)
    A(f"""
    v_lshlrev_b32 v7, 5, v1
    s_lshl_b32 s{sT0}, s{sHW}, 11
    v_add_u32 v7, s{sT0}, v7
    ds_write_b128 v7, v[16:19] offset:{L_XN4}
    ds_write_b128 v7, v[20:23] offset:{L_XN4 + 16}
    v_mov_b32 v12, 1
    s_mov_b64 exec, 1
    ds_add_u32 v63, v12 offset:{C1}
    s_mov_b64 exec, -1
    """)
    stamp(2)
    A(f"""
    s_cmp_lg_u32 s{sHALF}, 0
    s_cbranch_scc1 L_pubx
    """)
    lds_spin(C1, 4, "c1a", 63, 12)
    A(f"""
    s_lshl_b32 s{sT0}, s{sB}, 9
    s_lshl_b32 s{sT1}, s{sHW}, 7
    s_add_u32 s{sT0}, s{sT0}, s{sT1}
    v_lshlrev_b32 v7, 5, v5
    v_add_u32 v7, s{sT0}, v7               ; (128b + 32w' + 8g)*4
    """)
    for bp in range(4):
        A(f"ds_read_b128 v[{64 + 8 * bp}:{67 + 8 * bp}], v7 offset:{L_XN4 + 2048 * bp}")
        A(f"ds_read_b128 v[{68 + 8 * bp}:{71 + 8 * bp}], v7 offset:{L_XN4 + 2048 * bp + 16}")
    AQ = 96
    for j in range(32):
        A(f"v_mov_b32 v{AQ + j}, 0")
    A("s_waitcnt lgkmcnt(0)")
    for i in range(8):
        A(f"s_waitcnt vmcnt({7 - i})")
        for bp in range(4):
            x = 64 + 8 * bp + i
            A(f"v_lshrrev_b32 v{30 + (bp & 1)}, 16, v{x}")
            for q in range(4):
                A(f"v_dot2c_f32_bf16 v{AQ + 8 * bp + 2 * q + 1}, v{W + 4 * i + q}, v{x}")
            for q in range(4):
                A(f"v_dot2c_f32_bf16 v{AQ + 8 * bp + 2 * q}, v{W + 4 * i + q}, v{30 + (bp & 1)}")
    stamp(2)
    for bp in range(4):
        reduce8(AQ + 8 * bp)
    A(f"""
    v_lshlrev_b32 v7, 5, v6
    v_lshl_add_u32 v7, v5, 2, v7
    """)
    for bp in range(4):
        A(f"ds_add_f32 v7, v{AQ + 8 * bp} offset:{L_QS + 512 * bp}")
        A(f"ds_add_f32 v7, v{AQ + 8 * bp + 4} offset:{L_QS + 512 * bp + 16}")
    A(f"""
    v_mov_b32 v12, 1
    s_mov_b64 exec, 1
    ds_add_rtn_u32 v13, v63, v12 offset:{C2}
    s_mov_b64 exec, -1
    s_waitcnt lgkmcnt(0)
    v_readfirstlane_b32 s{sT0}, v13
    s_cmp_lg_u32 s{sT0}, 3
    s_cbranch_scc1 L_pubx
    ds_read_b128 v[16:19], v2 offset:{L_QS}
    ds_read_b128 v[20:23], v2 offset:{L_QS + 1024}
    s_lshl_b32 s{sT0}, s{sH}, 2
    s_add_u32 s{sT0}, s{sT0}, s{sB}
    s_add_u32 s{sT2}, s{sT0}, 128
    s_lshl_b32 s{sT0}, s{sT0}, 11
    s_add_u32 s{sT0}, s{sT0}, {W_QP}
    s_getreg_b32 s{sT1}, hwreg(HW_REG_XCC_ID)
    s_and_b32 s{sT1}, s{sT1}, 15
    s_or_b32 s{sT1}, s{sT1}, 0x80
    v_mov_b32 v12, s{sT1}
    v_mov_b32 v13, s{sT2}
    s_waitcnt lgkmcnt(0)
    buffer_store_dwordx4 v[16:19], v2, s[{SRD_WS}:{SRD_WS + 3}], s{sT0} offen
    buffer_store_dwordx4 v[20:23], v2, s[{SRD_WS}:{SRD_WS + 3}], s{sT0} offen offset:1024
    s_mov_b64 exec, 1
    s_waitcnt vmcnt(0)
    global_store_byte v13, v12, s[{sDBG}:{sDBG + 1}]
    s_mov_b64 exec, -1
    L_pubx:
    """)
    stamp(2)
    A(f"""
    s_cmp_lg_u32 s{sHW}, 0
    s_cbranch_scc1 L_waitdec
    s_getreg_b32 s{sT1}, hwreg(HW_REG_XCC_ID)
    s_and_b32 s{sT1}, s{sT1}, 15
    s_or_b32 s{sT1}, s{sT1}, 0x80
    s_mul_i32 s{sT1}, s{sT1}, 0x01010101
    s_lshl_b32 s{sT0}, s{sH}, 2
    s_add_u32 s{sT0}, s{sT0}, 128
    v_mov_b32 v13, s{sT0}
    L_qf:
    global_load_dword v12, v13, s[{sDBG}:{sDBG + 1}] sc1
    s_memrealtime s[{sT2}:{sT3}]
    s_waitcnt vmcnt(0) lgkmcnt(0)
    v_readfirstlane_b32 s{sT0}, v12
    s_cmp_eq_u32 s{sT0}, s{sT1}
    s_cbranch_scc1 L_qok
    s_sub_u32 s{sT2}, s{sT2}, s{sTS}
    s_cmp_lt_u32 s{sT2}, {qto}
    s_cbranch_scc1 L_qf
    v_mov_b32 v12, 2
    ds_write_b32 v63, v12 offset:{DEC}
    s_branch L_qfb
    L_qok:
    v_mov_b32 v12, 1
    ds_write_b32 v63, v12 offset:{DEC}
    v_lshrrev_b32 v14, 5, v1
    v_and_b32 v15, 31, v1
    v_lshlrev_b32 v14, 11, v14
    v_lshl_add_u32 v14, v15, 4, v14
    s_lshl_b32 s{sT0}, s{sH}, 13
    s_lshl_b32 s{sT1}, s{sB}, 9
    s_add_u32 s{sT0}, s{sT0}, s{sT1}
    s_add_u32 s{sT0}, s{sT0}, {W_QP}
    s_add_u32 s{sT1}, s{sT0}, 4096
    buffer_load_dwordx4 v[16:19], v14, s[{SRD_WS}:{SRD_WS + 3}], s{sT0} offen sc1
    buffer_load_dwordx4 v[20:23], v14, s[{SRD_WS}:{SRD_WS + 3}], s{sT1} offen sc1
    s_waitcnt vmcnt(1)
    ds_write_b128 v2, v[16:19] offset:{L_QP}
    s_waitcnt vmcnt(0)
    ds_write_b128 v2, v[20:23] offset:{L_QP + 1024}
    s_branch L_qdone
    L_waitdec:
    """)
    lds_spin(DEC, 1, "dec", 63, 12)
    A(f"""
    s_cmp_eq_u32 s{sT0}, 1
    s_cbranch_scc1 L_qdone
    L_qfb:
    s_lshl_b32 s{sT1}, s{sHW}, 20          ; 128*w' rows * 8192
    v_lshlrev_b32 v7, 18, v5               ; 32*g*8192
    v_lshl_add_u32 v7, v6, 4, v7
    """)
    for i in range(32):
        A(f"buffer_load_dwordx4 v[{W + 4 * i}:{W + 4 * i + 3}], v7, s[{SRD_T}:{SRD_T + 3}], s{sT1} offen {qnt}")
        if i < 31:
            A(f"s_add_u32 s{sT1}, s{sT1}, 8192")
    lds_spin(C1, 4, "c1b", 63, 12)
    A(f"""
    s_lshl_b32 s{sT0}, s{sHW}, 9
    s_lshl_b32 s{sT1}, s{sB}, 11
    s_add_u32 s{sT0}, s{sT0}, s{sT1}
    v_lshlrev_b32 v7, 7, v5
    v_add_u32 v7, s{sT0}, v7               ; b*2048 + (128w'+32g)*4
    """)
    for n in range(8):
        A(f"ds_read_b128 v[{64 + 4 * n}:{67 + 4 * n}], v7 offset:{L_XN4 + 16 * n}")
    for j in range(8):
        A(f"v_mov_b32 v{32 + j}, 0")
    A("s_waitcnt lgkmcnt(0)")
    for i in range(32):
        if i % 4 == 0:
            A(f"s_waitcnt vmcnt({28 - i})")
        A(f"v_lshrrev_b32 v{30 + (i & 1)}, 16, v{64 + i}")
        for q in range(4):
            A(f"v_dot2c_f32_bf16 v{32 + 2 * q + 1}, v{W + 4 * i + q}, v{64 + i}")
        for q in range(4):
            A(f"v_dot2c_f32_bf16 v{32 + 2 * q}, v{W + 4 * i + q}, v{30 + (i & 1)}")
    reduce8(32)
    A(f"""
    v_lshlrev_b32 v7, 5, v6
    v_lshl_add_u32 v7, v5, 2, v7
    s_lshl_b32 s{sT0}, s{sHW}, 9
    v_add_u32 v7, s{sT0}, v7
    ds_write_b32 v7, v32 offset:{L_QP}
    ds_write_b32 v7, v36 offset:{L_QP + 16}
    L_qdone:
    s_waitcnt lgkmcnt(0)
    s_barrier
    """)
    stamp(0)
    A(f"""
    s_mov_b32 s{sTAIL}, s{sR}
    s_cmp_eq_u32 s{sXC}, 0
    s_cselect_b32 s{sTAIL}, s{sTAIL}, -1
    s_cmp_lg_u32 s{sHW}, 0
    s_cbranch_scc1 L_noclear
    v_mov_b32 v8, -1
    v_mov_b32 v9, -1
    v_mov_b32 v10, -1
    v_mov_b32 v11, -1
    s_lshl_b32 s{sT0}, s{sH}, 13
    s_and_b32 s{sT1}, s{sR}, 7
    s_lshl_b32 s{sT1}, s{sT1}, 10
    s_add_u32 s{sT0}, s{sT0}, s{sT1}
    s_add_u32 s{sT0}, s{sT0}, {W_Y}
    {'' if 'c' in skip else f'''buffer_store_dwordx4 v[8:11], v2, s[{SRD_WS}:{SRD_WS + 3}], s{sT0} offen sc1'''}
    s_mov_b32 exec_lo, -1
    s_mov_b32 exec_hi, 0
    s_lshl_b32 s{sT0}, s2, 9
    s_add_u32 s{sT0}, s{sT0}, {W_OT}
    buffer_store_dwordx4 v[8:11], v2, s[{SRD_WS}:{SRD_WS + 3}], s{sT0} offen sc1
    s_mov_b64 exec, 1
    s_lshl_b32 s{sT0}, s{sR}, 7
    s_lshl_b32 s{sT1}, s{sXC}, 2
    s_add_u32 s{sT0}, s{sT0}, s{sT1}
    s_add_u32 s{sT0}, s{sT0}, {W_TM}
    buffer_store_dword v8, v2, s[{SRD_WS}:{SRD_WS + 3}], s{sT0} offen sc1
    s_getreg_b32 s{sT1}, hwreg(HW_REG_XCC_ID)
    s_and_b32 s{sT1}, s{sT1}, 15
    v_mov_b32 v12, s{sT1}
    s_lshl_b32 s{sT0}, s{sH}, 5
    s_and_b32 s{sT1}, s{sR}, 7
    s_lshl_b32 s{sT1}, s{sT1}, 2
    s_add_u32 s{sT0}, s{sT0}, s{sT1}
    s_add_u32 s{sT0}, s{sT0}, {W_XID + 1024}
    buffer_store_dword v12, v2, s[{SRD_WS}:{SRD_WS + 3}], s{sT0} offen sc1
    s_mov_b64 exec, 0xf
    s_lshl_b32 s{sT0}, s2, 7
    s_add_u32 s{sT1}, s{sT0}, {W_CNT}
    buffer_store_dwordx4 v[8:11], v2, s[{SRD_WS}:{SRD_WS + 3}], s{sT1} offen sc1
    s_mov_b64 exec, 0xff
    s_add_u32 s{sT0}, s{sT0}, {W_ML}
    {'' if 'c' in skip else f'''buffer_store_dwordx4 v[8:11], v2, s[{SRD_WS}:{SRD_WS + 3}], s{sT0} offen sc1'''}
    s_cmp_lg_u32 s{sXC}, 0
    s_cbranch_scc1 L_noclear2
    s_lshl_b32 s{sT0}, s{sR}, 7
    s_add_u32 s{sT0}, s{sT0}, {W_H}
    {'' if 'c' in skip else f'''buffer_store_dwordx4 v[8:11], v2, s[{SRD_WS}:{SRD_WS + 3}], s{sT0} offen sc1'''}
    s_mov_b64 exec, -1
    s_lshl_b32 s{sT0}, s{sR}, 13
    s_add_u32 s{sT0}, s{sT0}, {W_PO}
    s_add_u32 s{sT1}, s{sT0}, 4096
    {'' if 'c' in skip else f'''buffer_store_dwordx4 v[8:11], v2, s[{SRD_WS}:{SRD_WS + 3}], s{sT0} offen sc1'''}
    {'' if 'c' in skip else f'''buffer_store_dwordx4 v[8:11], v2, s[{SRD_WS}:{SRD_WS + 3}], s{sT0} offen offset:1024 sc1'''}
    {'' if 'c' in skip else f'''buffer_store_dwordx4 v[8:11], v2, s[{SRD_WS}:{SRD_WS + 3}], s{sT0} offen offset:2048 sc1'''}
    {'' if 'c' in skip else f'''buffer_store_dwordx4 v[8:11], v2, s[{SRD_WS}:{SRD_WS + 3}], s{sT0} offen offset:3072 sc1'''}
    {'' if 'c' in skip else f'''buffer_store_dwordx4 v[8:11], v2, s[{SRD_WS}:{SRD_WS + 3}], s{sT1} offen sc1'''}
    {'' if 'c' in skip else f'''buffer_store_dwordx4 v[8:11], v2, s[{SRD_WS}:{SRD_WS + 3}], s{sT1} offen offset:1024 sc1'''}
    {'' if 'c' in skip else f'''buffer_store_dwordx4 v[8:11], v2, s[{SRD_WS}:{SRD_WS + 3}], s{sT1} offen offset:2048 sc1'''}
    {'' if 'c' in skip else f'''buffer_store_dwordx4 v[8:11], v2, s[{SRD_WS}:{SRD_WS + 3}], s{sT1} offen offset:3072 sc1'''}
    s_mov_b64 exec, 1
    s_getreg_b32 s{sT1}, hwreg(HW_REG_XCC_ID)
    s_and_b32 s{sT1}, s{sT1}, 15
    v_mov_b32 v12, s{sT1}
    s_lshl_b32 s{sT0}, s{sR}, 2
    s_add_u32 s{sT0}, s{sT0}, {W_XID}
    buffer_store_dword v12, v2, s[{SRD_WS}:{SRD_WS + 3}], s{sT0} offen sc1
    L_noclear2:
    s_mov_b64 exec, 1
    v_mov_b32 v12, 1
    v_mov_b32 v13, 0
    s_waitcnt vmcnt(0)
    global_atomic_add v13, v12, s[{sDBG}:{sDBG + 1}]
    s_mov_b64 exec, -1
    L_noclear:
    """)
    A(f"""
    s_lshl_b32 s{sT0}, s{sH}, 17
    s_and_b32 s{sT1}, s{sR}, 7
    s_lshl_b32 s{sT1}, s{sT1}, 7
    s_add_u32 s{sT0}, s{sT0}, s{sT1}
    s_add_u32 s{SRD_T}, s{sWO}, s{sT0}
    s_addc_u32 s{SRD_T + 1}, s{sWO + 1}, 0
    s_sub_u32 s{SRD_T + 2}, 0x400000, s{sT0}
    v_lshrrev_b32 v8, 3, v1
    v_and_b32 v9, 7, v1
    v_lshlrev_b32 v7, 10, v8
    v_lshl_add_u32 v7, v9, 4, v7
    s_lshl_b32 s{sT1}, s{sHW}, 15          ; 32 w' rows * 1024
    """)
    for i in range(4):
        A(f"buffer_load_dwordx4 v[{W + 4 * i}:{W + 4 * i + 3}], v7, s[{SRD_T}:{SRD_T + 3}], s{sT1} offen {WNT}")
        A(f"s_add_u32 s{sT1}, s{sT1}, 8192")
    A(f"""
    v_mul_u32_u24 v7, {WO_P}, v8
    v_lshl_add_u32 v7, v9, 4, v7
    s_mul_i32 s{sT0}, s{sHW}, {32 * WO_P}
    s_add_u32 s{sT0}, s{sT0}, {L_WO}
    v_add_u32 v7, s{sT0}, v7
    """)
    for i in range(4):
        A(f"s_waitcnt vmcnt({3 - i})")
        A(f"ds_write_b128 v7, v[{W + 4 * i}:{W + 4 * i + 3}] offset:{8 * WO_P * i}")
    F1 = 128
    F2 = 64
    XR = 63
    A(f"""
    s_cmp_lg_u32 s{sXC}, 0
    s_cbranch_scc1 L_noffn
    s_lshl_b32 s{sT0}, s{sR}, 5
    v_lshlrev_b32 v8, 10, v5
    v_lshl_add_u32 v8, v6, 1, v8
    v_add_u32 v8, s{sT0}, v8
    global_load_ushort v{XR}, v8, s[{sX}:{sX + 1}]
    s_cmp_ge_u32 s{sR}, {0 if 'f' in skip else 28}
    s_cbranch_scc1 L_noffn1
    s_waitcnt lgkmcnt(0)
    s_mov_b32 s{SRD_T}, s{sWD}
    s_mov_b32 s{SRD_T + 1}, s{sWD + 1}
    s_mov_b32 s{SRD_T + 2}, {1792 * 1024}
    v_lshlrev_b32 v7, 10, v5
    v_lshl_add_u32 v7, v6, 4, v7           ; g*1024 + c*16
    s_lshl_b32 s{sT0}, s{sR}, 16
    s_lshl_b32 s{sT1}, s{sHW}, 8
    s_add_u32 s{sT1}, s{sT1}, s{sT0}
    """)
    for i in range(16):
        A(f"buffer_load_dwordx4 v[{F2 + 4 * i}:{F2 + 4 * i + 3}], v7, s[{SRD_T}:{SRD_T + 3}], s{sT1} offen {WNT}")
        A(f"s_add_u32 s{sT1}, s{sT1}, 4096")
    A(f"""
    v_lshrrev_b32 v8, 3, v1
    v_and_b32 v9, 7, v1
    v_mul_u32_u24 v7, 3584, v8
    v_lshl_add_u32 v7, v9, 4, v7
    s_mov_b32 s{SRD_T + 2}, {512 * 3584}
    """)
    for m, sp in enumerate((sWG, sWU)):
        A(f"""
        s_mov_b32 s{SRD_T}, s{sp}
        s_mov_b32 s{SRD_T + 1}, s{sp + 1}
        s_mul_i32 s{sT1}, s{sHW}, {128 * 3584}
        s_lshl_b32 s{sT0}, s{sR}, 7
        s_add_u32 s{sT1}, s{sT1}, s{sT0}
        """)
        for i in range(16):
            r = F1 + 64 * m + 4 * i
            A(f"buffer_load_dwordx4 v[{r}:{r + 3}], v7, s[{SRD_T}:{SRD_T + 3}], s{sT1} offen {WNT}")
            A(f"s_add_u32 s{sT1}, s{sT1}, {8 * 3584}")
    A(f"""
    s_mul_i32 s{sT0}, s{sHW}, {STG_SZ}
    s_add_u32 s{sT0}, s{sT0}, {L_STG}
    v_mul_u32_u24 v10, 288, v5
    v_lshl_add_u32 v10, v6, 4, v10
    v_add_u32 v10, s{sT0}, v10             ; wd staging write: g*288 + c*16
    v_mul_u32_u24 v11, 160, v8
    v_lshl_add_u32 v11, v9, 4, v11
    v_add_u32 v11, s{sT0}, v11             ; g/u staging write: (l>>3)*160 + (l&7)*16
    v_lshrrev_b32 v12, 2, v6
    v_lshl_add_u32 v12, v5, 2, v12         ; row = 4g + (c>>2)
    v_and_b32 v13, 3, v6
    v_lshlrev_b32 v13, 3, v13
    v_add_u32 v13, s{sT0}, v13
    v_mad_u32_u24 v14, v12, 288, v13       ; invalid literal? replaced below
    """.replace("v_mad_u32_u24 v14, v12, 288, v13       ; invalid literal? replaced below",
                "v_mul_u32_u24 v14, 288, v12\nv_add_u32 v14, v14, v13\nv_mul_u32_u24 v15, 160, v12\nv_add_u32 v15, v15, v13"))
    for ks in range(2):
        A(f"s_waitcnt vmcnt({32 + 8 - 8 * ks})")
        for i in range(8):
            r = F2 + 32 * ks + 4 * i
            A(f"ds_write_b128 v10, v[{r}:{r + 3}] offset:{4 * 288 * i}")
        for nt in range(8):
            r = F2 + 32 * ks + 4 * nt
            A(f"ds_read_b64_tr_b16 v[{r}:{r + 1}], v14 offset:{32 * nt}")
            A(f"ds_read_b64_tr_b16 v[{r + 2}:{r + 3}], v14 offset:{16 * 288 + 32 * nt}")
    for ms in range(8):
        A(f"s_waitcnt vmcnt({28 - 4 * ms})")
        for i in range(4):
            r = F1 + 16 * ms + 4 * i
            A(f"ds_write_b128 v11, v[{r}:{r + 3}] offset:{8 * 160 * i}")
        for nt in range(4):
            r = F1 + 16 * ms + 4 * nt
            A(f"ds_read_b64_tr_b16 v[{r}:{r + 1}], v15 offset:{32 * nt}")
            A(f"ds_read_b64_tr_b16 v[{r + 2}:{r + 3}], v15 offset:{16 * 160 + 32 * nt}")
    A(f"""
    L_noffn1:
    s_waitcnt vmcnt(0)
    L_noffn:
    s_waitcnt lgkmcnt(0)
    """)
    A(f"""
    s_mov_b32 s{sLOCH}, 0
    s_cmp_lg_u32 s{sHW}, 0
    s_cbranch_scc1 L_noarr
    v_add_u32 v8, 5, v1
    v_lshlrev_b32 v9, 9, v8
    v_lshlrev_b32 v8, 15, v8
    s_lshl_b32 s{sT0}, s{sXC}, 21
    v_add_u32 v8, s{sT0}, v8
    v_add_u32 v9, {L_SC}, v9
    v_mov_b32 v10, s{sXC}
    s_or_b32 s{sT0}, s{sXC}, 0x200
    v_mov_b32 v11, s{sT0}
    v_cmp_eq_u32 vcc, {drow - 5 if drow else 63}, v1
    v_cndmask_b32 v10, v10, v11, vcc
    v_mov_b32 v11, 0
    v_cmp_gt_u32 vcc, 19, v1
    v_cndmask_b32 v8, -2, v8, vcc
    v_add_u32 v12, {L_TAB}, v2
    ds_write_b128 v12, v[8:11]
    v_mov_b32 v17, 0
    s_mov_b32 s{sSPIN}, 0
    {chr(10).join(['s_sleep 127'] * apre)}
    L_arr:
    {'s_sleep ' + str(asleep) if asleep else ''}
    global_load_dword v24, v17, s[{sDBG}:{sDBG + 1}] sc1
    s_waitcnt vmcnt(0)
    v_readfirstlane_b32 s{sT0}, v24
    s_add_u32 s{sSPIN}, s{sSPIN}, 1
    s_cmp_gt_u32 s{sSPIN}, {SPIN}
    s_cbranch_scc1 L_noarr
    s_cmp_lt_u32 s{sT0}, 256
    s_cbranch_scc1 L_arr
    v_and_b32 v8, 7, v1
    v_lshlrev_b32 v8, 2, v8
    s_lshl_b32 s{sT0}, s{sH}, 5
    s_add_u32 s{sT0}, s{sT0}, {W_XID + 1024}
    buffer_load_dword v9, v8, s[{SRD_WS}:{SRD_WS + 3}], s{sT0} offen sc1
    s_waitcnt vmcnt(0)
    v_readfirstlane_b32 s{sT1}, v9
    v_cmp_ne_u32 vcc, s{sT1}, v9
    s_cmp_eq_u64 vcc, 0
    s_cselect_b32 s{sLOCH}, {1 if local else 0}, 0
    L_noarr:
    s_waitcnt lgkmcnt(0)
    """)
    stamp()
    TMPUB = f"""
    s_mov_b64 exec, 1
    s_and_b32 s{sT2}, s{sTS}, 0x7fffffff
    v_mov_b32 v30, 0
    v_mov_b32 v24, s{sT2}
    s_lshl_b32 s{sT0}, s{sR}, 7
    s_lshl_b32 s{sT1}, s{sXC}, 2
    s_add_u32 s{sT0}, s{sT0}, s{sT1}
    s_add_u32 s{sT0}, s{sT0}, {W_TM}
    buffer_store_dword v24, v30, s[{SRD_WS}:{SRD_WS + 3}], s{sT0} offen sc1
    s_mov_b64 exec, -1
    """
    TMPUB0 = '' if drow else TMPUB
    midphase_common(8, 16)
    stamp()
    A(f"""
    s_cmp_lg_u32 s{sHW}, 0
    s_cbranch_scc1 L_noex
    s_memrealtime s[{sTS}:{sTS + 1}]
    ds_read_b128 v[24:27], v17 offset:{L_MISC + 32}
    ds_read_b128 v[28:31], v17 offset:{L_MISC + 48}
    s_waitcnt lgkmcnt(0)
    v_add_f32 v24, v24, v25
    v_add_f32 v26, v26, v27
    v_add_f32 v28, v28, v29
    v_add_f32 v30, v30, v31
    v_add_f32 v24, v24, v26
    v_add_f32 v28, v28, v30
    v_add_f32 v21, v24, v28
    s_mov_b64 exec, 1
    s_lshl_b32 s{sT0}, s2, 7
    s_add_u32 s{sT0}, s{sT0}, {W_ML}
    """)
    pub_store([f"buffer_store_dwordx2 v[20:21], v17, s[{SRD_WS}:{SRD_WS + 3}], s{sT0} offen"], sLOCH)
    A(f"""
    s_mov_b64 exec, -1
    {TMPUB0}
    s_xor_b32 s{sT1}, s2, 8
    s_lshl_b32 s{sT1}, s{sT1}, 7
    s_add_u32 s{sT1}, s{sT1}, {W_ML}
    """)
    poll([f"buffer_load_dwordx2 v[24:25], v17, s[{SRD_WS}:{SRD_WS + 3}], s{sT1} offen sc1"], [24, 25], "ml")
    A(f"""
    v_max_f32 v26, v20, v24            ; m
    v_sub_f32 v27, v20, v26
    v_sub_f32 v28, v24, v26
    v_mul_f32 v27, s{sLOG2E}, v27
    v_mul_f32 v28, s{sLOG2E}, v28
    v_exp_f32 v27, v27
    v_exp_f32 v28, v28
    v_mul_f32 v29, v21, v27
    v_mul_f32 v30, v25, v28
    v_add_f32 v29, v29, v30            ; l
    v_rcp_f32 v30, v29
    v_mul_f32 v31, v27, v30
    v_fma_f32 v24, -v31, v29, v27
    v_fma_f32 v31, v24, v30, v31       ; c = f/l
    ds_write_b32 v17, v31 offset:{L_MISC + 64}
    s_waitcnt lgkmcnt(0)
    L_noex:
    """)
    stamp()
    midphase_end(8, 16)
    if local:
        A(f"""
        s_mov_b32 s{sLOCAL}, 0
        s_cmp_lg_u32 s{sXC}, 0
        s_cbranch_scc1 L_noloc
        v_and_b32 v8, 31, v1
        v_lshlrev_b32 v8, 2, v8
        s_mov_b32 s{sT0}, {W_XID}
        buffer_load_dword v9, v8, s[{SRD_WS}:{SRD_WS + 3}], s{sT0} offen sc1
        s_waitcnt vmcnt(0)
        v_readfirstlane_b32 s{sT1}, v9
        v_cmp_ne_u32 vcc, s{sT1}, v9
        s_cmp_eq_u64 vcc, 0
        s_cselect_b32 s{sLOCAL}, 1, 0
        L_noloc:
        """)
    sD0, sDN, sR0, sRN, sE, sJ, sMK, sKK = 66, 67, 68, 69, 71, 100, 101, 58
    A(f"""
    s_cmp_lg_u32 s{sHW}, 0
    s_cbranch_scc1 L_noplan
    """)
    if drow:
        A(f"""
        v_mov_b32 v30, 0
        s_mov_b32 s{sSPIN}, 0
        L_wdec:
        s_sleep 2
        ds_read_b32 v19, v30 offset:{L_MISC + 148}
        s_waitcnt lgkmcnt(0)
        v_readfirstlane_b32 s{sT0}, v19
        s_add_u32 s{sSPIN}, s{sSPIN}, 1
        s_cmp_gt_u32 s{sSPIN}, {SPIN * 20}
        s_cbranch_scc1 L_wdecx
        s_cmp_eq_u32 s{sT0}, 0
        s_cbranch_scc1 L_wdec
        L_wdecx:
        s_memrealtime s[{sTS}:{sTS + 1}]
        s_waitcnt lgkmcnt(0)
        """)
        A(TMPUB)
    A(f"""
    v_and_b32 v8, 7, v1
    v_lshlrev_b32 v9, 2, v8
    s_lshl_b32 s{sT0}, s{sR}, 7
    s_add_u32 s{sT0}, s{sT0}, {W_TM}
    """)
    poll([f"buffer_load_dword v10, v9, s[{SRD_WS}:{SRD_WS + 3}], s{sT0} offen sc1"], [10], "tm", sleep=psl)
    A(f"""
    v_readfirstlane_b32 s{sT0}, v10
    v_subrev_u32 v10, s{sT0}, v10
    v_lshlrev_b32 v10, 1, v10
    v_ashrrev_i32 v10, 1, v10
    v_cvt_f32_i32 v10, v10
    v_add_f32_dpp v11, v10, v10 row_ror:1 row_mask:0xf bank_mask:0xf
    v_add_f32_dpp v11, v11, v11 row_ror:2 row_mask:0xf bank_mask:0xf
    v_add_f32_dpp v11, v11, v11 row_ror:4 row_mask:0xf bank_mask:0xf
    v_readfirstlane_b32 s{sT0}, v11
    v_mov_b32 v11, s{sT0}
    s_mov_b32 s{sT1}, 0xbe000000
    v_fma_f32 v10, v11, s{sT1}, v10        ; t - mean
    v_mul_f32 v10, 0x{ROWRATE:08x}, v10
    v_rndne_f32 v10, v10
    v_cvt_i32_f32 v10, v10
    v_max_i32 v11, 0, v10
    v_min_i32 v11, {GMAX}, v11             ; d
    v_sub_u32 v12, 0, v10
    v_max_i32 v12, 0, v12
    v_min_i32 v12, {GMAX}, v12             ; r
    v_cmp_gt_u32 vcc, 8, v1
    v_cndmask_b32 v11, 0, v11, vcc
    v_cndmask_b32 v12, 0, v12, vcc
    v_mov_b32 v13, v11
    v_mov_b32 v14, v12
    """)
    for sh_ in (1, 2, 4):
        A(f"v_add_u32_dpp v13, v13, v13 row_shr:{sh_} row_mask:0xf bank_mask:0xf bound_ctrl:0")
        A(f"v_add_u32_dpp v14, v14, v14 row_shr:{sh_} row_mask:0xf bank_mask:0xf bound_ctrl:0")
    A(f"""
    v_readlane_b32 s{sT0}, v13, 7
    v_readlane_b32 s{sT1}, v14, 7
    v_sub_u32 v13, v13, v11                ; D excl
    v_sub_u32 v14, v14, v12                ; R excl
    s_min_u32 s{sT0}, s{sT0}, s{sT1}
    v_sub_u32 v15, s{sT0}, v13
    v_max_i32 v15, 0, v15
    v_min_i32 v11, v11, v15                ; d'
    v_sub_u32 v15, s{sT0}, v14
    v_max_i32 v15, 0, v15
    v_min_i32 v12, v12, v15                ; r'
    v_add_u32 v16, v13, v11                ; D end
    v_add_u32 v17, v14, v12                ; R end
    v_readlane_b32 s{sD0}, v13, s{sXC}
    v_readlane_b32 s{sDN}, v11, s{sXC}
    v_readlane_b32 s{sR0}, v14, s{sXC}
    v_readlane_b32 s{sRN}, v12, s{sXC}
    v_mov_b32 v30, 0
    v_mov_b32 v31, {L_TAB + 19 * 16}
    s_mov_b32 s{sMK}, 0
    s_cmp_eq_u32 s{sDN}, 0
    s_cbranch_scc1 L_nodon
    s_mov_b32 s{sE}, 0
    v_and_b32 v18, 31, v1
    v_lshlrev_b32 v18, 4, v18
    s_mov_b32 exec_hi, 0
    L_don:
    s_sub_u32 s{sT0}, 31, s{sE}
    s_lshl_b32 s{sT0}, s{sT0}, 9
    v_add_u32 v19, s{sT0}, v18
    ds_read_b128 v[20:23], v19 offset:{L_SC}
    s_lshl_b32 s{sT0}, s2, 12
    s_lshl_b32 s{sT1}, s{sE}, 9
    s_add_u32 s{sT0}, s{sT0}, s{sT1}
    s_add_u32 s{sT0}, s{sT0}, {W_P}
    s_waitcnt lgkmcnt(0)
    buffer_store_dwordx4 v[20:23], v18, s[{SRD_WS}:{SRD_WS + 3}], s{sT0} offen sc1
    s_add_u32 s{sE}, s{sE}, 1
    s_cmp_lt_u32 s{sE}, s{sDN}
    s_waitcnt vmcnt(0)
    s_cbranch_scc1 L_don
    s_mov_b64 exec, 1
    s_lshl_b32 s{sT0}, s2, 7
    s_add_u32 s{sT0}, s{sT0}, {W_CNT + 16}
    buffer_store_dword v30, v30, s[{SRD_WS}:{SRD_WS + 3}], s{sT0} offen sc1
    s_mov_b64 exec, -1
    L_nodon:
    s_mov_b32 s{sE}, 0
    v_and_b32 v18, 31, v1
    v_lshlrev_b32 v18, 4, v18
    L_rcv:
    s_cmp_ge_u32 s{sE}, s{sRN}
    s_cbranch_scc1 L_rcvx
    s_add_u32 s{sKK}, s{sR0}, s{sE}
    v_cmp_ge_u32 vcc, s{sKK}, v13
    v_cmp_lt_u32 s[{sT2}:{sT3}], s{sKK}, v16
    s_and_b64 vcc, vcc, s[{sT2}:{sT3}]
    s_and_b32 s{sT0}, vcc_lo, 0xff
    s_ff1_i32_b32 s{sJ}, s{sT0}
    s_and_b32 s{sJ}, s{sJ}, 7
    v_readlane_b32 s{sT0}, v13, s{sJ}
    s_sub_u32 s{sKK}, s{sKK}, s{sT0}
    s_lshl_b32 s{sT0}, 1, s{sJ}
    s_or_b32 s{sMK}, s{sMK}, s{sT0}
    s_lshl_b32 s{sT0}, s{sR}, 3
    s_add_u32 s{sT0}, s{sT0}, s{sJ}
    s_lshl_b32 s{sT1}, s{sT0}, 12
    s_lshl_b32 s{sT0}, s{sT0}, 7
    s_add_u32 s{sT0}, s{sT0}, {W_CNT + 16}
    """)
    poll([f"buffer_load_dword v19, v30, s[{SRD_WS}:{SRD_WS + 3}], s{sT0} offen sc1"], [19], "pf", sleep=min(psl, 64))
    A(f"""
    s_lshl_b32 s{sT0}, s{sKK}, 9
    s_add_u32 s{sT1}, s{sT1}, s{sT0}
    s_add_u32 s{sT1}, s{sT1}, {W_P}
    buffer_load_dwordx4 v[20:23], v18, s[{SRD_WS}:{SRD_WS + 3}], s{sT1} offen sc1
    s_lshl_b32 s{sT0}, s{sE}, 9
    s_add_u32 s{sT0}, s{sT0}, {L_EXT}
    v_add_u32 v19, s{sT0}, v18
    v_mov_b32 v25, s{sT0}
    s_sub_u32 s{sKK}, 31, s{sKK}
    s_lshl_b32 s{sKK}, s{sKK}, 15
    s_lshl_b32 s{sT0}, s{sJ}, 21
    s_add_u32 s{sKK}, s{sKK}, s{sT0}
    v_mov_b32 v24, s{sKK}
    v_mov_b32 v26, s{sJ}
    v_mov_b32 v27, 0
    s_waitcnt vmcnt(0)
    ds_write_b128 v19, v[20:23]
    ds_write_b128 v31, v[24:27]
    v_add_u32 v31, 16, v31
    s_add_u32 s{sE}, s{sE}, 1
    s_branch L_rcv
    L_rcvx:
    v_add_u32 v24, 24, v1
    v_lshlrev_b32 v25, 9, v24
    v_lshlrev_b32 v24, 15, v24
    s_lshl_b32 s{sT0}, s{sXC}, 21
    v_add_u32 v24, s{sT0}, v24
    v_add_u32 v25, {L_SC}, v25
    s_or_b32 s{sT1}, s{sXC}, 0x100
    v_mov_b32 v26, s{sXC}
    v_mov_b32 v28, s{sT1}
    v_cmp_eq_u32 vcc, 0, v1
    v_cndmask_b32 v26, v26, v28, vcc
    s_cmp_eq_u32 s{sRN}, 0
    s_cbranch_scc0 L_keepflag
    v_mov_b32 v26, s{sXC}
    L_keepflag:
    v_mov_b32 v27, 0
    s_sub_u32 s{sT0}, 8, s{sDN}
    v_cmp_gt_u32 vcc, s{sT0}, v1
    v_cndmask_b32 v24, -1, v24, vcc
    v_add_u32 v19, v31, v2
    s_mov_b64 exec, 0x1ff
    ds_write_b128 v19, v[24:27]
    s_mov_b64 exec, -1
    s_cmp_eq_u32 s{sRN}, 0
    s_cbranch_scc1 L_nosend
    s_mov_b32 s{sSPIN}, 0
    L_wsig:
    s_sleep 4
    ds_read_b32 v19, v30 offset:{L_MISC + 132}
    s_waitcnt lgkmcnt(0)
    v_readfirstlane_b32 s{sT0}, v19
    s_add_u32 s{sSPIN}, s{sSPIN}, 1
    s_cmp_gt_u32 s{sSPIN}, {SPIN * 20}
    s_cbranch_scc1 L_snd
    s_cmp_lt_u32 s{sT0}, 4
    s_cbranch_scc1 L_wsig
    L_snd:
    s_ff1_i32_b32 s{sJ}, s{sMK}
    s_lshl_b32 s{sT0}, 1, s{sJ}
    s_xor_b32 s{sMK}, s{sMK}, s{sT0}
    s_lshl_b32 s{sT0}, s{sJ}, 9
    v_add_u32 v19, s{sT0}, v18
    ds_read_b128 v[20:23], v19 offset:{L_ACC}
    s_lshl_b32 s{sT0}, s{sR}, 3
    s_add_u32 s{sT0}, s{sT0}, s{sJ}
    s_lshl_b32 s{sT0}, s{sT0}, 12
    s_lshl_b32 s{sT1}, s{sXC}, 9
    s_add_u32 s{sT0}, s{sT0}, s{sT1}
    s_add_u32 s{sT0}, s{sT0}, {W_O}
    s_mov_b32 exec_hi, 0
    s_waitcnt lgkmcnt(0)
    buffer_store_dwordx4 v[20:23], v18, s[{SRD_WS}:{SRD_WS + 3}], s{sT0} offen sc1
    s_lshl_b32 s{sT0}, s{sR}, 3
    s_add_u32 s{sT0}, s{sT0}, s{sJ}
    s_lshl_b32 s{sT0}, s{sT0}, 7
    s_lshl_b32 s{sT1}, s{sXC}, 2
    s_add_u32 s{sT0}, s{sT0}, s{sT1}
    s_add_u32 s{sT0}, s{sT0}, {W_CNT + 32}
    s_mov_b64 exec, 1
    s_waitcnt vmcnt(0)
    buffer_store_dword v30, v30, s[{SRD_WS}:{SRD_WS + 3}], s{sT0} offen sc1
    s_mov_b64 exec, -1
    s_cmp_lg_u32 s{sMK}, 0
    s_cbranch_scc1 L_snd
    L_nosend:
    s_cmp_eq_u32 s{sDN}, 0
    s_cbranch_scc1 L_noplan
    s_add_u32 s{sT0}, s{sD0}, s{sDN}
    v_cmp_gt_u32 vcc, s{sT0}, v14
    v_cmp_lt_u32 s[{sT2}:{sT3}], s{sD0}, v17   ; D0 < R end
    s_and_b64 vcc, vcc, s[{sT2}:{sT3}]
    v_cmp_lt_u32 s[{sT2}:{sT3}], 0, v12
    s_and_b64 vcc, vcc, s[{sT2}:{sT3}]
    s_and_b32 s{sMK}, vcc_lo, 0xff
    s_lshl_b32 s{sT0}, s{sXC}, 9
    v_add_u32 v29, s{sT0}, v18
    L_col:
    s_ff1_i32_b32 s{sJ}, s{sMK}
    s_lshl_b32 s{sT0}, 1, s{sJ}
    s_xor_b32 s{sMK}, s{sMK}, s{sT0}
    s_lshl_b32 s{sT0}, s2, 7
    s_lshl_b32 s{sT1}, s{sJ}, 2
    s_add_u32 s{sT0}, s{sT0}, s{sT1}
    s_add_u32 s{sT0}, s{sT0}, {W_CNT + 32}
    """)
    poll([f"buffer_load_dword v19, v30, s[{SRD_WS}:{SRD_WS + 3}], s{sT0} offen sc1"], [19], "in", sleep=psl)
    A(f"""
    s_lshl_b32 s{sT0}, s2, 12
    s_lshl_b32 s{sT1}, s{sJ}, 9
    s_add_u32 s{sT0}, s{sT0}, s{sT1}
    s_add_u32 s{sT0}, s{sT0}, {W_O}
    buffer_load_dwordx4 v[20:23], v18, s[{SRD_WS}:{SRD_WS + 3}], s{sT0} offen sc1
    s_waitcnt vmcnt(0)
    s_mov_b32 exec_hi, 0
    ds_add_f32 v29, v20 offset:{L_ACC}
    ds_add_f32 v29, v21 offset:{L_ACC + 4}
    ds_add_f32 v29, v22 offset:{L_ACC + 8}
    ds_add_f32 v29, v23 offset:{L_ACC + 12}
    s_mov_b64 exec, -1
    s_cmp_lg_u32 s{sMK}, 0
    s_waitcnt lgkmcnt(0)
    s_cbranch_scc1 L_col
    L_noplan:
    s_waitcnt lgkmcnt(0)
    """)
    WF = 40
    HK = 62
    A(f"""
    v_lshrrev_b32 v8, 2, v6                ; i>>2
    v_lshl_add_u32 v8, v5, 2, v8           ; row = 4g + (i>>2)
    v_mul_u32_u24 v8, {WO_P}, v8
    v_and_b32 v9, 3, v6
    v_lshl_add_u32 v8, v9, 3, v8
    s_lshl_b32 s{sT0}, s{sHW}, 5
    s_add_u32 s{sT0}, s{sT0}, {L_WO}
    v_add_u32 v8, s{sT0}, v8
    """)
    for s_ in range(4):
        A(f"ds_read_b64_tr_b16 v[{WF + 4 * s_}:{WF + 4 * s_ + 1}], v8 offset:{32 * s_ * WO_P}")
        A(f"ds_read_b64_tr_b16 v[{WF + 4 * s_ + 2}:{WF + 4 * s_ + 3}], v8 offset:{(32 * s_ + 16) * WO_P}")
    A(f"""
    v_lshrrev_b32 v10, 5, v1
    v_and_b32 v11, 31, v1
    v_lshlrev_b32 v36, 12, v10
    v_lshl_add_u32 v36, v11, 4, v36
    s_mul_i32 s{sT0}, s{sHW}, {OB_P}
    v_lshlrev_b32 v37, 3, v11
    v_add_u32 v37, s{sT0}, v37
    v_mul_u32_u24 v38, {OB_P}, v9
    v_lshl_add_u32 v38, v5, 3, v38
    v_add_u32 v38, {L_OB}, v38
    s_lshl_b32 s{sT0}, s{sXC}, 9
    v_lshl_add_u32 v39, v11, 4, s{sT0}
    v_lshlrev_b32 v35, 4, v6               ; v35: c*16
    s_lshl_b32 s{sKOFF}, s{sXC}, 9
    s_lshl_b32 s{sT0}, s{sHL}, 15
    s_add_u32 s{sKOFF}, s{sKOFF}, s{sT0}
    s_lshl_b32 s{sT0}, s{sHW}, 13
    s_add_u32 s{sKOFF}, s{sKOFF}, s{sT0}
    s_add_u32 s{sKOFF}, s{sKOFF}, {W_OT}
    s_lshl_b32 s{sVOFF}, s{sH}, 13
    s_and_b32 s{sT0}, s{sR}, 7
    s_lshl_b32 s{sT0}, s{sT0}, 10
    s_add_u32 s{sVOFF}, s{sVOFF}, s{sT0}
    s_lshl_b32 s{sT0}, s{sHW}, 8
    s_add_u32 s{sVOFF}, s{sVOFF}, s{sT0}
    s_add_u32 s{sVOFF}, s{sVOFF}, {W_Y}
    """)
    if warm:
        A(f"""
        s_getpc_b64 s[{sT2}:{sT3}]
        s_min_u32 s{sT0}, s{sHW}, 2
        s_lshl_b32 s{sT0}, s{sT0}, 10
        v_add_u32 v8, s{sT0}, v2
        global_load_dwordx4 v[12:15], v8, s[{sT2}:{sT3}]
        s_waitcnt vmcnt(0)
        """)
    A(f"""
    s_waitcnt lgkmcnt(0)
    s_barrier
    """)
    stamp()
    stamp(3)
    A(f"""
    s_cmp_lg_u32 s{sHW}, 0
    s_cbranch_scc1 L_nopub
    ds_read_b128 v[8:11], v39 offset:{L_ACC}
    s_mov_b32 exec_hi, 0
    s_lshl_b32 s{sT0}, s2, 9
    s_add_u32 s{sT0}, s{sT0}, {W_OT}
    s_waitcnt lgkmcnt(0)
    """)
    pub_store([f"buffer_store_dwordx4 v[8:11], v2, s[{SRD_WS}:{SRD_WS + 3}], s{sT0} offen"], sLOCH)
    A(f"""
    s_mov_b64 exec, -1
    L_nopub:
    """)
    poll([f"buffer_load_dwordx4 v[16:19], v36, s[{SRD_WS}:{SRD_WS + 3}], s{sKOFF} offen sc1"], [16, 17, 18, 19], "o")
    for j in range(4):
        A(f"v_mov_b32 v{20 + j}, v{16 + j}")
    for j in range(4):
        A(f"v_permlane32_swap_b32 v{16 + j}, v{20 + j}")
    for j in range(4):
        A(f"v_add_f32 v{16 + j}, v{16 + j}, v{20 + j}")
    A(f"""
    v_cvt_pk_bf16_f32 v16, v16, v17
    v_cvt_pk_bf16_f32 v17, v18, v19
    ds_write_b64 v37, v[16:17] offset:{L_OB}
    s_waitcnt lgkmcnt(0)
    s_barrier
    """)
    stamp()
    for s_ in range(4):
        A(f"ds_read2_b64 v[{16 + 4 * s_}:{19 + 4 * s_}], v38 offset0:{8 * s_} offset1:{8 * s_ + 4}")
    for s_ in range(4):
        A(f"s_waitcnt lgkmcnt({0 if stamps else 3 - s_})")
        A(f"v_mfma_f32_16x16x32_bf16 v[8:11], v[{16 + 4 * s_}:{19 + 4 * s_}], v[{WF + 4 * s_}:{WF + 4 * s_ + 3}], {'0' if s_ == 0 else 'v[8:11]'}")
    A(f"""
    s_mov_b64 exec, 0xffff
    buffer_store_dwordx4 v[8:11], v35, s[{SRD_WS}:{SRD_WS + 3}], s{sVOFF} offen sc1
    s_mov_b64 exec, -1
    """)
    stamp()
    stamp(3)
    A(f"""
    s_cmp_lg_u32 s{sXC}, 0
    s_cbranch_scc1 L_fin
    """)
    A(f"""
    s_lshl_b32 s{sT0}, s{sHW}, 16
    s_lshl_b32 s{sT1}, s{sR}, 8
    s_add_u32 s{sT0}, s{sT0}, s{sT1}
    s_add_u32 s{sT0}, s{sT0}, {W_Y}
    s_add_u32 s{sT1}, s{sT0}, 32768
    v_lshlrev_b32 v12, 13, v5
    v_lshl_add_u32 v12, v6, 4, v12
    """)
    poll([f"buffer_load_dwordx4 v[16:19], v12, s[{SRD_WS}:{SRD_WS + 3}], s{sT0} offen sc1",
          f"buffer_load_dwordx4 v[20:23], v12, s[{SRD_WS}:{SRD_WS + 3}], s{sT1} offen sc1"], list(range(16, 24)), "y")
    stamp()
    stamp(3)
    A(f"""
    v_add_f32 v16, v16, v20
    v_add_f32 v17, v17, v21
    v_add_f32 v18, v18, v22
    v_add_f32 v19, v19, v23
    v_permlane16_swap_b32 v16, v17
    v_permlane16_swap_b32 v18, v19
    v_add_f32 v16, v16, v17
    v_add_f32 v18, v18, v19
    v_permlane32_swap_b32 v16, v18
    v_add_f32 v16, v16, v18
    s_lshl_b32 s{sT0}, s{sHW}, 8
    v_lshlrev_b32 v12, 2, v1
    v_add_u32 v13, s{sT0}, v12
    ds_write_b32 v13, v16 offset:{L_RED}
    s_waitcnt lgkmcnt(0)
    s_barrier
    s_cmp_lg_u32 s{sHW}, 0
    s_cbranch_scc1 L_not2
    ds_read_b32 v16, v12 offset:{L_RED}
    ds_read_b32 v17, v12 offset:{L_RED + 256}
    ds_read_b32 v18, v12 offset:{L_RED + 512}
    ds_read_b32 v19, v12 offset:{L_RED + 768}
    v_lshlrev_b32 v24, 16, v{XR}
    v_lshlrev_b32 v12, 10, v5
    v_lshl_add_u32 v12, v6, 1, v12         ; b*1024 + c*2
    s_lshl_b32 s{sT0}, s{sR}, 5
    s_add_u32 s{sT0}, s{sT0}, {W_H}
    s_waitcnt lgkmcnt(0)
    v_add_f32 v16, v16, v17
    v_add_f32 v18, v18, v19
    v_add_f32 v16, v16, v18
    v_cvt_pk_bf16_f32 v16, v16, v16
    v_lshlrev_b32 v16, 16, v16
    v_add_f32 v16, v16, v24
    v_mov_b32_dpp v17, v16 quad_perm:[1,0,3,2] row_mask:0xf bank_mask:0xf
    v_cvt_pk_bf16_f32 v16, v16, v17
    v_lshlrev_b32 v{HK}, 16, v16
    s_mov_b32 exec_lo, 0x55555555
    s_mov_b32 exec_hi, 0x55555555
    """)
    pub_store([f"buffer_store_dword v16, v12, s[{SRD_WS}:{SRD_WS + 3}], s{sT0} offen"])
    A(f"""
    s_mov_b64 exec, -1
    L_not2:
    s_lshl_b32 s{sT0}, s{sHW}, 10
    s_add_u32 s{sT0}, s{sT0}, {W_H}
    v_mov_b32 v12, v2
    s_cmp_ge_u32 s{sR}, 28
    s_cbranch_scc1 L_t4
    """)
    poll([f"buffer_load_dwordx4 v[8:11], v12, s[{SRD_WS}:{SRD_WS + 3}], s{sT0} offen sc1"], [8, 9, 10, 11], "h")
    stamp()
    stamp(3)
    layernorm(8, 16, 24)
    stamp(3)
    A(f"""
    s_mul_i32 s{sT0}, s{sHW}, {HN_P}
    v_add_u32 v12, s{sT0}, v2
    ds_write_b128 v12, v[8:11] offset:{L_HN}
    v_and_b32 v13, 3, v6
    v_mul_u32_u24 v57, {HHL_P}, v13
    v_lshl_add_u32 v57, v5, 3, v57
    v_add_u32 v57, {L_HHL}, v57
    v_mul_u32_u24 v13, {HN_P}, v13
    v_lshl_add_u32 v13, v5, 3, v13
    s_lshl_b32 s{sT0}, s{sHW}, 8
    s_add_u32 s{sT0}, s{sT0}, {L_HN}
    v_add_u32 v56, s{sT0}, v13
    s_waitcnt lgkmcnt(0)
    s_barrier
    """)
    stamp(3)
    AF, AC = 8, 24
    for s4 in range(4):
        A(f"ds_read2_b64 v[{AF + 4 * s4}:{AF + 4 * s4 + 3}], v56 offset0:{8 * s4} offset1:{8 * s4 + 4}")
    for s4 in range(4):
        A(f"s_waitcnt lgkmcnt(0)" if stamps == 3 else f"s_waitcnt lgkmcnt({3 - s4})")
        for m in range(2):
            for nt in range(4):
                d = AC + 16 * m + 4 * nt
                f = F1 + 16 * (4 * m + s4) + 4 * nt
                A(f"v_mfma_f32_16x16x32_bf16 v[{d}:{d + 3}], v[{AF + 4 * s4}:{AF + 4 * s4 + 3}], v[{f}:{f + 3}], {'0' if s4 == 0 else f'v[{d}:{d + 3}]'}")
    A(f"""
    s_lshl_b32 s{sT0}, s{sHW}, 11
    v_lshlrev_b32 v12, 4, v6
    v_add_u32 v12, s{sT0}, v12
    s_mov_b64 exec, 0xffff
    """)
    stamp(3)
    for T_ in range(8):
        A(f"ds_write_b128 v12, v[{AC + 4 * T_}:{AC + 4 * T_ + 3}] offset:{L_RED1 + 256 * T_}")
    A(f"""
    s_mov_b64 exec, -1
    s_lshl_b32 s{sT0}, s{sHW}, 2
    v_add_u32 v12, s{sT0}, v2              ; f*16 + b*4
    s_mul_i32 s{sT1}, s{sHW}, {HHL_P}
    v_lshlrev_b32 v13, 1, v1
    v_add_u32 v13, s{sT1}, v13
    s_waitcnt lgkmcnt(0)
    s_barrier
    """)
    stamp(3)
    for w in range(4):
        A(f"ds_read_b32 v{16 + w}, v12 offset:{L_RED1 + 2048 * w}")
        A(f"ds_read_b32 v{20 + w}, v12 offset:{L_RED1 + 2048 * w + 1024}")
    A(f"""
    s_waitcnt lgkmcnt(0)
    v_add_f32 v16, v16, v17
    v_add_f32 v18, v18, v19
    v_add_f32 v20, v20, v21
    v_add_f32 v22, v22, v23
    v_add_f32 v16, v16, v18
    v_add_f32 v20, v20, v22
    v_cvt_pk_bf16_f32 v16, v16, v20
    v_lshlrev_b32 v17, 16, v16             ; g
    v_and_b32 v18, s{sMASK}, v16           ; u
    v_mul_f32 v17, 0xbfb8aa3b, v17
    v_exp_f32 v17, v17
    v_add_f32 v17, 1.0, v17
    v_rcp_f32 v19, v17
    v_fma_f32 v17, -v17, v19, 1.0
    v_fma_f32 v17, v17, v19, v19
    v_cvt_pk_bf16_f32 v17, v17, v17
    v_lshlrev_b32 v17, 16, v17
    v_mul_f32 v17, v17, v18
    v_cvt_pk_bf16_f32 v17, v17, v17
    ds_write_b16 v13, v17 offset:{L_HHL}
    s_waitcnt lgkmcnt(0)
    s_barrier
    ds_read2_b64 v[8:11], v57 offset0:0 offset1:4
    ds_read2_b64 v[12:15], v57 offset0:8 offset1:12
    """)
    stamp(3)
    for ks in range(2):
        A(f"s_waitcnt lgkmcnt(0)" if stamps == 3 else f"s_waitcnt lgkmcnt({1 - ks})")
        for nt in range(8):
            d = AC + 4 * nt
            f = F2 + 32 * ks + 4 * nt
            A(f"v_mfma_f32_16x16x32_bf16 v[{d}:{d + 3}], v[{8 + 4 * ks}:{11 + 4 * ks}], v[{f}:{f + 3}], {'0' if ks == 0 else f'v[{d}:{d + 3}]'}")
    A(f"""
    s_lshl_b32 s{sT0}, s{sR}, 13
    s_lshl_b32 s{sT1}, s{sHW}, 11
    s_add_u32 s{sT0}, s{sT0}, s{sT1}
    s_add_u32 s{sT0}, s{sT0}, {W_PO}
    v_lshlrev_b32 v12, 4, v6
    s_mov_b64 exec, 0xffff
    """)
    pub_store([f"buffer_store_dwordx4 v[{AC + 4 * nt}:{AC + 4 * nt + 3}], v12, s[{SRD_WS}:{SRD_WS + 3}], s{sT0} offen offset:{256 * nt}" for nt in range(8)])
    A("s_mov_b64 exec, -1")
    A.label("L_t4")
    stamp()
    stamp(3)
    A(f"""
    s_lshl_b32 s{sT0}, s{sHW}, 16
    s_lshl_b32 s{sT1}, s{sR}, 8
    s_add_u32 s{sT0}, s{sT0}, s{sT1}
    s_add_u32 s{sT0}, s{sT0}, {W_PO}
    s_add_u32 s{sT1}, s{sT0}, 32768
    s_cmp_eq_u32 s{sHW}, 3
    s_cselect_b32 s{sT1}, s{sT0}, s{sT1}
    s_cselect_b32 s{sCNT}, 0, 1.0
    v_lshlrev_b32 v12, 13, v5
    v_lshl_add_u32 v12, v6, 4, v12
    """)
    poll([f"buffer_load_dwordx4 v[16:19], v12, s[{SRD_WS}:{SRD_WS + 3}], s{sT0} offen sc1",
          f"buffer_load_dwordx4 v[20:23], v12, s[{SRD_WS}:{SRD_WS + 3}], s{sT1} offen sc1"], list(range(16, 24)), "po")
    stamp()
    A(f"""
    v_fma_f32 v16, v20, s{sCNT}, v16
    v_fma_f32 v17, v21, s{sCNT}, v17
    v_fma_f32 v18, v22, s{sCNT}, v18
    v_fma_f32 v19, v23, s{sCNT}, v19
    v_permlane16_swap_b32 v16, v17
    v_permlane16_swap_b32 v18, v19
    v_add_f32 v16, v16, v17
    v_add_f32 v18, v18, v19
    v_permlane32_swap_b32 v16, v18
    v_add_f32 v16, v16, v18
    s_lshl_b32 s{sT0}, s{sHW}, 8
    v_lshlrev_b32 v12, 2, v1
    v_add_u32 v13, s{sT0}, v12
    ds_write_b32 v13, v16 offset:{L_RED + 1024}
    v_lshlrev_b32 v13, 10, v5
    v_lshl_add_u32 v13, v6, 1, v13
    s_lshl_b32 s{sT0}, s{sR}, 5
    v_add_u32 v13, s{sT0}, v13             ; b*1024 + (16t+n)*2
    s_waitcnt lgkmcnt(0)
    s_barrier
    s_cmp_lg_u32 s{sHW}, 0
    s_cbranch_scc1 L_fin
    ds_read_b32 v16, v12 offset:{L_RED + 1024}
    ds_read_b32 v17, v12 offset:{L_RED + 1024 + 256}
    ds_read_b32 v18, v12 offset:{L_RED + 1024 + 512}
    ds_read_b32 v19, v12 offset:{L_RED + 1024 + 768}
    s_waitcnt lgkmcnt(0)
    v_add_f32 v16, v16, v17
    v_add_f32 v18, v18, v19
    v_add_f32 v16, v16, v18
    v_cvt_pk_bf16_f32 v16, v16, v16
    v_lshlrev_b32 v16, 16, v16
    v_add_f32 v16, v16, v{HK}
    v_cvt_pk_bf16_f32 v16, v16, v16
    global_store_short v13, v16, s[{sOUT}:{sOUT + 1}]
    L_fin:
    """)
    if stamps:
        stamp(0)
        A(f"""
        s_cmp_lg_u32 s{sHW}, 0
        s_cbranch_scc1 L_end
        s_waitcnt lgkmcnt(0)
        s_lshl_b32 s{sT0}, s2, 7
        s_add_u32 s{sT0}, s{sT0}, {STAMP_OFF}
        v_mov_b32 v12, s{sT0}
        s_mov_b64 exec, 1
        """)
        A(f"s_getreg_b32 s{sT1}, hwreg(HW_REG_XCC_ID)")
        A(f"v_mov_b32 v8, s{sT1}")
        A(f"global_store_dword v12, v8, s[{sWS}:{sWS + 1}] offset:120")
        A("s_nop 1")
        for i in range(nst[0]):
            A(f"v_mov_b32 v8, s{sST + 2 * i}")
            A(f"v_mov_b32 v9, s{sST + 2 * i + 1}")
            A(f"global_store_dwordx2 v12, v[8:9], s[{sWS}:{sWS + 1}] offset:{8 * i}")
            A("s_nop 1")
    A.label("L_end")
    body, npad = A.render()
    txt = HEAD + f"""; Override launch geometry by editing the next line (default: block=256,
; grid=ceil(out_elems/256), lds=0). Harness parses it; keep it on one line.
; @launch grid=(256,1,1) block=(512,1,1) lds={LDS_BYTES}
.amdgcn_target "amdgcn-amd-amdhsa--gfx950"
.text
.globl {KN}
.p2align 8
.type {KN},@function
{KN}:
{body}
    s_endpgm
.section .rodata,"a"
.p2align 6
.amdhsa_kernel {KN}
  .amdhsa_next_free_vgpr 256
  .amdhsa_next_free_sgpr 102
  .amdhsa_accum_offset 256
  .amdhsa_group_segment_fixed_size 0
  .amdhsa_kernarg_size 96
  .amdhsa_float_denorm_mode_32 3
  .amdhsa_user_sgpr_count 2
  .amdhsa_user_sgpr_kernarg_segment_ptr 1
  .amdhsa_system_sgpr_workgroup_id_x 1
.end_amdhsa_kernel
"""
    return txt, npad, nst[0]


if __name__ == "__main__":
    out = sys.argv[1]
    kv = dict(x.split("=") for x in sys.argv[2:])
    txt, npad, ns = gen(DIST=int(kv.get("dist", 2)), stamps=int(kv.get("stamps", 0)), local=bool(int(kv.get("local", 0))), wnt=kv.get("wnt", "nt"), qnt=kv.get("qnt", ""), fill=int(kv.get("fill", 0)), prio=int(kv.get("prio", 0)), deep=int(kv.get("deep", 0)), prog=int(kv.get("prog", 0)), LEAD=int(kv.get("lead", 8)), b0=int(kv.get("b0", 0)), skip=kv.get("skip", ""), rowt=float(kv.get("rowt", 109.0)), GMAX=int(kv.get("gmax", 8)), asleep=int(kv.get("asleep", 0)), qto=int(kv.get("qto", 1200)), psl=int(kv.get("psl", 8)), apre=int(kv.get("apre", 0)), drow=int(kv.get("drow", 0)), warm=int(kv.get("warm", 0)))
    open(out, "w").write(txt)
    print(out, "pads", npad, "stamps", ns, "bytes", len(txt), "lds", LDS_BYTES)
```

```python
import sys
from asmlib import Asm

KN = "sequential_preLN__mha_block_cached__glu_gated_glu__decode_kernel"
HEAD = open("sequential_preLN__mha_block_cached__glu_gated_glu__decode.s.ref").read().split("; Override launch")[0]

L_SC = 0
L_XN = 16384
L_QP = L_XN + 2048
L_ACC = L_QP + 2048
L_MISC = L_ACC + 4096
L_RED = L_MISC + 256
L_OB = L_RED + 2048
OB_P = 272
L_HN = L_OB + 1280
HN_P = 1088
L_HR = L_HN + 4 * HN_P
L_WO = L_HR + 4096
WO_P = 160
L_STG = L_WO + 128 * WO_P
STG_SZ = 9216
L_RED1 = L_SC
L_HHL = L_SC + 8192
HHL_P = 144
L_TAB = L_STG + 4 * STG_SZ
L_EXT = L_TAB + 1024
L_END = L_EXT + 4096
LDS_BYTES = (L_END + 255) // 256 * 256

W_ML = 0x000000
W_CNT = 0x010000
W_XID = 0x020000
W_Y = 0x030000
W_H = 0x070000
W_HH = 0x072000
W_O = 0x080000
W_PO = 0x180000
W_P = 0x200000
W_QP = 0x340000
W_OT = 0x300000
W_TM = 0x028000
WS_SIZE = 0x800000
STAMP_OFF = 512 << 20

SCALE = 0x3DB504F3
LOG2E = 0x3FB8AA3B
EPS = 0x3727C5AC
SPIN = 40000

sX, sK, sV, sWQ, sWO, sWG, sWU, sWD, sOUT, sDBG, sWS = 4, 6, 8, 10, 12, 16, 18, 20, 22, 24, 26
SRD_K, SRD_V, SRD_WS, SRD_T = 28, 32, 36, 40
sWAVE, sXC, sR, sHL, sH, sB, sHALF, sLIST = 44, 45, 46, 47, 48, 49, 50, 51
sT0, sT1, sT2, sT3 = 52, 53, 54, 55
sKOFF, sVOFF, sCNT = 56, 57, 58
sSCALE, sLOG2E, sMASK, sSELLO, sSELHI = 59, 60, 61, 62, 63
sHW = 64
sSPIN = 65
sTAIL = 66
sEX = 68
sST = 72
sLOCAL = 70
sTS = 98
sLOCH = 3


def gen(DIST=2, stamps=False, local=False, wnt='nt', qnt='', fill=2, prio=0, deep=0, prog=0, LEAD=8, b0=0, skip='', rowt=109.0, GMAX=8, asleep=0, qto=1200, psl=8, tsl=8, isl=8, apre=0, drow=0, warm=0, PST=24):
    import struct
    ROWRATE = struct.unpack('<I', struct.pack('<f', 1.0 / rowt))[0]
    WNT = wnt
    A = Asm()
    nst = [0]

    def stamp(kind=1):
        if stamps and (stamps == kind or kind == 0):
            A(f"s_memrealtime s[{sST + 2 * nst[0]}:{sST + 2 * nst[0] + 1}]")
            nst[0] += 1

    def wave_allreduce(op, v, t):
        for r in (8, 4, 2, 1):
            A(f"{op}_dpp v{v}, v{v}, v{v} row_ror:{r} row_mask:0xf bank_mask:0xf")
        A(f"v_mov_b32 v{t}, v{v}")
        A(f"v_permlane16_swap_b32 v{v}, v{t}")
        A(f"{op} v{v}, v{v}, v{t}")
        A(f"v_mov_b32 v{t}, v{v}")
        A(f"v_permlane32_swap_b32 v{v}, v{t}")
        A(f"{op} v{v}, v{v}, v{t}")

    def reduce8(a):
        for j in (0, 2, 4, 6):
            A(f"v_permlane16_swap_b32 v{a + j}, v{a + j + 1}")
        for j in (0, 2, 4, 6):
            A(f"v_add_f32 v{a + j}, v{a + j}, v{a + j + 1}")
        for j in (0, 4):
            A(f"v_permlane32_swap_b32 v{a + j}, v{a + j + 2}")
        for j in (0, 4):
            A(f"v_add_f32 v{a + j}, v{a + j}, v{a + j + 2}")

    def rbf(v):
        A(f"v_cvt_pk_bf16_f32 v{v}, v{v}, v{v}")
        A(f"v_lshlrev_b32 v{v}, 16, v{v}")

    def layernorm(pk, f, t):
        for j in range(4):
            A(f"v_lshlrev_b32 v{f + 2 * j}, 16, v{pk + j}")
            A(f"v_and_b32 v{f + 2 * j + 1}, s{sMASK}, v{pk + j}")
        A(f"v_add_f32 v{t}, v{f}, v{f + 1}")
        for j in range(2, 8):
            A(f"v_add_f32 v{t}, v{t}, v{f + j}")
        wave_allreduce("v_add_f32", t, t + 1)
        A(f"v_mul_f32 v{t}, 0x3b000000, v{t}")
        A(f"v_sub_f32 v{t + 1}, v{f}, v{t}")
        A(f"v_mul_f32 v{t + 2}, v{t + 1}, v{t + 1}")
        for j in range(1, 8):
            A(f"v_sub_f32 v{t + 1}, v{f + j}, v{t}")
            A(f"v_fmac_f32 v{t + 2}, v{t + 1}, v{t + 1}")
        wave_allreduce("v_add_f32", t + 2, t + 1)
        A(f"v_mul_f32 v{t + 2}, 0x3b000000, v{t + 2}")
        rbf(t)
        rbf(t + 2)
        A(f"v_add_f32 v{t + 2}, 0x{EPS:08x}, v{t + 2}")
        rbf(t + 2)
        A(f"v_sqrt_f32 v{t + 2}, v{t + 2}")
        rbf(t + 2)
        A(f"v_rcp_f32 v{t + 3}, v{t + 2}")
        for j in range(0, 8, 2):
            A(f"v_sub_f32 v{f + j}, v{f + j}, v{t}")
            A(f"v_sub_f32 v{f + j + 1}, v{f + j + 1}, v{t}")
            A(f"v_cvt_pk_bf16_f32 v{t + 1}, v{f + j}, v{f + j + 1}")
            A(f"v_lshlrev_b32 v{f + j}, 16, v{t + 1}")
            A(f"v_and_b32 v{f + j + 1}, s{sMASK}, v{t + 1}")
        for j in range(8):
            A(f"v_mul_f32 v{t + 4}, v{f + j}, v{t + 3}")
            A(f"v_fma_f32 v{t + 5}, -v{t + 4}, v{t + 2}, v{f + j}")
            A(f"v_fma_f32 v{f + j}, v{t + 5}, v{t + 3}, v{t + 4}")
        for j in range(0, 8, 2):
            A(f"v_cvt_pk_bf16_f32 v{pk + j // 2}, v{f + j}, v{f + j + 1}")
        for j in range(4):
            A(f"v_lshlrev_b32 v{f + 2 * j}, 16, v{pk + j}")
            A(f"v_and_b32 v{f + 2 * j + 1}, s{sMASK}, v{pk + j}")

    lab = [0]

    def poll(loads, regs, name, sleep=0):
        lab[0] += 1
        L = f"L_poll{lab[0]}_{name}"
        A(f"s_mov_b32 s{sSPIN}, 0")
        A.label(L)
        if sleep:
            A(f"s_sleep {sleep}")
        for l in loads:
            A(l)
        A("s_waitcnt vmcnt(0)")
        A(f"v_cmp_eq_u32 vcc, -1, v{regs[0]}")
        for r in regs[1:]:
            A(f"v_cmp_eq_u32 s[{sT2}:{sT3}], -1, v{r}")
            A(f"s_or_b64 vcc, vcc, s[{sT2}:{sT3}]")
        A(f"s_add_u32 s{sSPIN}, s{sSPIN}, 1")
        A(f"s_cmp_gt_u32 s{sSPIN}, {SPIN}")
        A(f"s_cbranch_scc1 {L}_x")
        A("s_cmp_lg_u64 vcc, 0")
        A(f"s_cbranch_scc1 {L}")
        A.label(L + "_x")

    def pub_store(ins, flag=None):
        flag = sLOCAL if flag is None else flag
        if local:
            lab[0] += 1
            A(f"""
            s_cmp_eq_u32 s{flag}, 1
            s_cbranch_scc1 L_ls{lab[0]}
            {chr(10).join(i + ' sc1' for i in ins)}
            s_branch L_le{lab[0]}
            L_ls{lab[0]}:
            s_nop 3
            {chr(10).join(ins)}
            L_le{lab[0]}:
            """)
        else:
            for i in ins:
                A(i + " sc1")

    if stamps == 2:
        stamp(2)
    A(f"""
    s_cmp_ge_u32 s2, 256
    s_cbranch_scc1 L_end
    s_load_dwordx16 s[4:19], s[0:1], 0
    s_load_dwordx8 s[20:27], s[0:1], 64
    v_lshrrev_b32 v3, 6, v0
    v_and_b32 v1, 63, v0
    v_readfirstlane_b32 s{sWAVE}, v3
    v_lshlrev_b32 v2, 4, v1
    s_and_b32 s{sXC}, s2, 7
    s_lshr_b32 s{sR}, s2, 3
    s_lshr_b32 s{sHL}, s{sR}, 3
    s_lshl_b32 s{sH}, s{sHL}, 3
    s_add_u32 s{sH}, s{sH}, s{sXC}
    s_bfe_u32 s{sB}, s{sR}, 0x20001
    s_and_b32 s{sHALF}, s{sR}, 1
    s_lshl_b32 s{sLIST}, s{sB}, 5
    s_add_u32 s{sLIST}, s{sLIST}, s{sH}
    s_lshl_b32 s{sLIST}, s{sLIST}, 1
    s_add_u32 s{sLIST}, s{sLIST}, s{sHALF}
    s_lshl_b32 s{sT0}, s{sLIST}, 20
    s_mov_b32 s{sSCALE}, 0x{SCALE:08x}
    s_mov_b32 s{sLOG2E}, 0x{LOG2E:08x}
    s_mov_b32 s{sMASK}, 0xffff0000
    s_mov_b32 s{sSELLO}, 0x05040100
    s_mov_b32 s{sSELHI}, 0x07060302
    s_mov_b32 s{SRD_K + 2}, 0x100000
    s_mov_b32 s{SRD_K + 3}, 0x20000
    s_mov_b32 s{SRD_V + 2}, 0xf00000
    s_mov_b32 s{SRD_V + 3}, 0x20000
    s_mov_b32 s{SRD_WS + 2}, 0x{WS_SIZE:x}
    s_mov_b32 s{SRD_WS + 3}, 0x20000
    s_mov_b32 s{SRD_T + 3}, 0x20000
    v_bfe_u32 v5, v0, 4, 2          ; g
    v_and_b32 v6, 15, v0            ; c
    """)
    if stamps:
        for i in range(nst[0] + 1, 14):
            A(f"s_mov_b64 s[{sST + 2 * i}:{sST + 2 * i + 1}], 0")
    stamp(0)
    A(f"""
    s_waitcnt lgkmcnt(0)
    s_add_u32 s{SRD_K}, s{sK}, s{sT0}
    s_addc_u32 s{SRD_K + 1}, s{sK + 1}, 0
    s_lshl_b32 s{sT1}, s{sXC}, 21
    s_sub_u32 s{sT0}, s{sT0}, s{sT1}
    s_add_u32 s{SRD_V}, s{sV}, s{sT0}
    s_addc_u32 s{SRD_V + 1}, s{sV + 1}, 0
    s_mov_b32 s{SRD_WS}, s{sWS}
    s_mov_b32 s{SRD_WS + 1}, s{sWS + 1}
    s_cmp_ge_u32 s{sWAVE}, 4
    s_cbranch_scc1 L_helper
    """)

    RING = 128
    Q = 8
    T = 12
    CA, CB = 16, 17
    TM = 18
    MX = 24
    ACC = 32
    PB = (40, 48)
    PLO = 56
    NH = 64
    issued = []
    nxt = [0]

    def slot(j):
        if deep and 8 <= j < 12:
            return 64 + 16 * (j - 8)
        if deep and 12 <= j < 16:
            return RING + 16 * (j - 12)
        return RING + 16 * (j % 8)

    landed = [0]

    def issue1():
        i = nxt[0]
        if i >= 8 * NH:
            return
        j, k = i // 4, i % 4
        srd, so = (SRD_K, sKOFF) if j < NH else (SRD_V, sVOFF)
        r = slot(j)
        A(f"buffer_load_dwordx4 v[{r + 4 * k}:{r + 4 * k + 3}], v2, s[{srd}:{srd + 3}], s{so} offen offset:{1024 * k} nt")
        if k == 3:
            A(f"s_add_u32 s{so}, s{so}, {4096 if j % 2 == 0 else 32768 - 4096}")
        nxt[0] += 1

    def issue_upto(last):
        while nxt[0] <= min(last, 8 * NH - 1):
            issue1()

    def wait_half(j):
        need = 4 * j + 4
        assert nxt[0] >= need
        A(f"s_waitcnt vmcnt({nxt[0] - need})")

    def pstamp():
        if prog:
            A(f"""
            s_memrealtime s[98:99]
            s_waitcnt lgkmcnt(0)
            s_mov_b32 m0, s100
            s_nop 0
            v_writelane_b32 v30, s98, m0
            s_add_u32 s100, s100, 1
            """)

    def kcompute(j):
        if j % 4 == 0:
            pstamp()
        r = slot(j)
        for q in range(4):
            for i in range(4):
                if q == 0:
                    A(f"v_dot2_f32_bf16 v{T + i}, v{r + 4 * i}, v{Q}, 0")
                else:
                    A(f"v_dot2_f32_bf16 v{T + i}, v{r + 4 * i + q}, v{Q + q}, v{T + i}")
        for ro in (8, 4, 2):
            for i in range(4):
                A(f"v_add_f32_dpp v{T + i}, v{T + i}, v{T + i} row_ror:{ro} row_mask:0xf bank_mask:0xf")
        C = CA if j % 2 == 0 else CB
        for i in range(4):
            A(f"v_add_f32_dpp v{C}, v{T + i}, v{T + i} row_ror:1 row_mask:0xf bank_mask:0x{1 << i:x}")
        if j % 2 == 1:
            off = ((j % 8) // 2) * 512
            A(f"""
            v_cvt_pk_bf16_f32 v{TM}, v{CA}, v{CB}
            v_lshlrev_b32 v{TM + 1}, 16, v{TM}
            v_and_b32 v{TM + 2}, s{sMASK}, v{TM}
            v_mul_f32 v{TM + 1}, s{sSCALE}, v{TM + 1}
            v_mul_f32 v{TM + 2}, s{sSCALE}, v{TM + 2}
            v_cvt_pk_bf16_f32 v{TM}, v{TM + 1}, v{TM + 2}
            v_lshlrev_b32 v{TM + 1}, 16, v{TM}
            v_and_b32 v{TM + 2}, s{sMASK}, v{TM}
            ds_write_b32 v4, v{TM + 1} offset:{off}
            ds_write_b32 v4, v{TM + 2} offset:{off + 16}
            v_max3_f32 v{MX}, v{MX}, v{TM + 1}, v{TM + 2}
            """)
            if j % 8 == 7:
                A("v_add_u32 v4, 2048, v4")

    def pread(chunk):
        pb = PB[chunk % 2]
        off = (chunk % 4) * 512
        A(f"ds_read_b128 v[{pb}:{pb + 3}], v3 offset:{off}")
        A(f"ds_read_b128 v[{pb + 4}:{pb + 7}], v3 offset:{off + 16}")

    def vcompute(j):
        if j % 4 == 0:
            pstamp()
        r = RING + 16 * (j % 8)
        pb = PB[(j // 2) % 2] + 4 * (j % 2)
        for i in range(4):
            A(f"v_lshrrev_b32 v{PLO + (i & 1)}, 16, v{pb + i}")
            for q in range(4):
                A(f"v_dot2c_f32_bf16 v{ACC + 2 * q + 1}, v{r + 4 * i + q}, v{pb + i}")
            for q in range(4):
                A(f"v_dot2c_f32_bf16 v{ACC + 2 * q}, v{r + 4 * i + q}, v{PLO + (i & 1)}")

    A("s_mov_b32 s100, 0")
    A("v_mov_b32 v30, 0")
    A(f"s_lshl_b32 s{sKOFF}, s{sWAVE}, 13")
    A(f"s_add_u32 s{sVOFF}, s{sKOFF}, s{sT1}")
    issue_upto(7)
    A("s_barrier")
    for n in range(8, 48 if deep else 32):
        if fill:
            if n % 2 == 0:
                A(f"s_waitcnt vmcnt({fill - 2})")
        issue1()
    A(f"""
    s_lshl_b32 s{sT0}, s{sWAVE}, 7
    v_lshlrev_b32 v3, 5, v5
    v_add_u32 v3, s{sT0}, v3
    v_lshrrev_b32 v4, 2, v6
    v_lshlrev_b32 v4, 2, v4
    v_add_u32 v4, v3, v4
    v_lshlrev_b32 v7, 5, v6             ; c*32
    v_mov_b32 v{MX}, 0xff800000
    """)
    A("s_barrier")
    QT = 32
    for w in range(4):
        A(f"ds_read_b128 v[{QT + 8 * w}:{QT + 3 + 8 * w}], v7 offset:{L_QP + 512 * w}")
        A(f"ds_read_b128 v[{QT + 4 + 8 * w}:{QT + 7 + 8 * w}], v7 offset:{L_QP + 512 * w + 16}")
    A("s_waitcnt lgkmcnt(0)")
    for j in range(8):
        A(f"v_add_f32 v{QT + j}, v{QT + j}, v{QT + 8 + j}")
        A(f"v_add_f32 v{QT + 16 + j}, v{QT + 16 + j}, v{QT + 24 + j}")
    for j in range(8):
        A(f"v_add_f32 v{QT + j}, v{QT + j}, v{QT + 16 + j}")
    for j in range(4):
        A(f"v_cvt_pk_bf16_f32 v{Q + j}, v{QT + 2 * j}, v{QT + 1 + 2 * j}")
    for j in range(8):
        A(f"v_mov_b32 v{ACC + j}, 0")

    def kstep(j, lead):
        wait_half(j)
        issue_upto(min(4 * j + 3 + lead, 4 * j + 31))
        kcompute(j)

    first = 16 if deep else 8
    for j in range(first):
        if deep and j < 13:
            wait_half(j)
            kcompute(j)
            if j < 4:
                issue_upto(4 * (12 + j) + 3)
        elif deep:
            kstep(j, min(LEAD, 12))
        else:
            kstep(j, LEAD)
    A(f"s_mov_b32 s{sCNT}, {5 if deep else 6}")
    A.label("L_kloop")
    d0 = nxt[0] - 4 * first
    for j in range(first, first + 8):
        kstep(j, LEAD)
    assert nxt[0] - 4 * first - 32 == d0
    A(f"s_sub_u32 s{sCNT}, s{sCNT}, 1")
    A(f"s_cmp_lg_u32 s{sCNT}, 0")
    A("s_cbranch_scc1 L_kloop")
    nxt[0] += 4 * (56 - first - 8)
    for j in range(56, 64):
        kstep(j, LEAD + 8 * (j - 55))
    issue_upto(4 * 72 - 1)
    for ro in (4, 8):
        A(f"v_max_f32_dpp v{MX}, v{MX}, v{MX} row_ror:{ro} row_mask:0xf bank_mask:0xf")
    A(f"""
    v_mov_b32 v{TM}, v{MX}
    v_permlane16_swap_b32 v{MX}, v{TM}
    v_max_f32 v{MX}, v{MX}, v{TM}
    v_mov_b32 v{TM}, v{MX}
    v_permlane32_swap_b32 v{MX}, v{TM}
    v_max_f32 v{MX}, v{MX}, v{TM}
    s_lshl_b32 s{sT0}, s{sWAVE}, 2
    v_mov_b32 v{TM}, s{sT0}
    ds_write_b32 v{TM}, v{MX} offset:{L_MISC}
    s_waitcnt lgkmcnt(0)
    """)

    def midphase_common(E, TT):
        A("s_barrier")
        A(f"""
        v_lshlrev_b32 v{TT}, 5, v0
        v_mov_b32 v{TT + 1}, 0
        ds_read_b128 v[{E}:{E + 3}], v{TT} offset:{L_SC}
        ds_read_b128 v[{E + 4}:{E + 7}], v{TT} offset:{L_SC + 16}
        ds_read_b128 v[{TT + 4}:{TT + 7}], v{TT + 1} offset:{L_MISC}
        s_waitcnt lgkmcnt(0)
        v_max_f32 v{TT + 4}, v{TT + 4}, v{TT + 5}
        v_max3_f32 v{TT + 4}, v{TT + 4}, v{TT + 6}, v{TT + 7}     ; m_loc
        """)
        for j in range(8):
            A(f"v_sub_f32 v{E + j}, v{E + j}, v{TT + 4}")
        for j in range(8):
            A(f"v_mul_f32 v{E + j}, s{sLOG2E}, v{E + j}")
        for j in range(8):
            A(f"v_exp_f32 v{E + j}, v{E + j}")
        A(f"v_add_f32 v{TT + 2}, v{E}, v{E + 1}")
        for j in range(2, 8):
            A(f"v_add_f32 v{TT + 2}, v{TT + 2}, v{E + j}")
        wave_allreduce("v_add_f32", TT + 2, TT + 3)
        A(f"""
        s_lshl_b32 s{sT0}, s{sWAVE}, 2
        v_mov_b32 v{TT + 3}, s{sT0}
        ds_write_b32 v{TT + 3}, v{TT + 2} offset:{L_MISC + 32}
        s_waitcnt lgkmcnt(0)
        s_barrier
        """)

    def midphase_end(E, TT):
        A("s_barrier")
        A(f"""
        ds_read_b32 v{TT + 2}, v{TT + 1} offset:{L_MISC + 64}
        s_waitcnt lgkmcnt(0)
        """)
        for j in range(8):
            A(f"v_mul_f32 v{E + j}, v{E + j}, v{TT + 2}")
        for j in range(0, 8, 2):
            A(f"v_cvt_pk_bf16_f32 v{TT + 3}, v{E + j}, v{E + j + 1}")
            A(f"v_lshlrev_b32 v{E + j}, 16, v{TT + 3}")
            A(f"v_and_b32 v{E + j + 1}, s{sMASK}, v{TT + 3}")
        A(f"""
        ds_write_b128 v{TT}, v[{E}:{E + 3}] offset:{L_SC}
        ds_write_b128 v{TT}, v[{E + 4}:{E + 7}] offset:{L_SC + 16}
        s_waitcnt lgkmcnt(0)
        s_barrier
        """)

    midphase_common(64, 72)
    midphase_end(64, 72)

    VE, VTA, VPA, VAD, VG = 60, 58, 59, 31, 64
    sNV, sNP, sNX, sLC, sAX, sW13 = 64, 66, 67, 68, 69, 70
    pread(0)
    A(f"""
    v_mov_b32 v{VTA}, {L_TAB}
    v_mov_b32 v{VG}, v3
    v_lshl_add_u32 v{VAD}, v5, 2, v7               ; (8c+g)*4
    s_mov_b32 s{sLC}, s{sXC}
    s_mov_b32 s{sAX}, s{sXC}
    s_lshl_b32 s{sW13}, s{sWAVE}, 13
    """)

    def vstep(jv):
        j = NH + jv
        if jv % 2 == 0:
            A("s_waitcnt lgkmcnt(0)")
        else:
            if jv % 8 == 7:
                A("v_add_u32 v3, 2048, v3")
            pread(jv // 2 + 1)
        wait_half(j)
        issue_upto(4 * j + 3 + 8)
        vcompute(jv)

    def vloads(r):
        for i in range(4):
            A(f"buffer_load_dwordx4 v[{r + 4 * i}:{r + 4 * i + 3}], v2, s[{SRD_V}:{SRD_V + 3}], s{sVOFF} offen offset:{1024 * i} nt")

    def flush():
        reduce8(ACC)
        A(f"""
        s_lshl_b32 s{sT0}, s{sAX}, 9
        v_add_u32 v{TM}, s{sT0}, v{VAD}
        ds_add_f32 v{TM}, v{ACC} offset:{L_ACC}
        ds_add_f32 v{TM}, v{ACC + 4} offset:{L_ACC + 16}
        """)

    def flushz(tag):
        A(f"""
        s_bitcmp1_b32 s{sLC}, 9
        s_cbranch_scc0 L_nodec{tag}
        v_mov_b32 v{TM + 1}, 1
        v_mov_b32 v{TM + 2}, 0
        ds_write_b32 v{TM + 2}, v{TM + 1} offset:{L_MISC + 148}
        s_and_b32 s{sLC}, s{sLC}, 7
        s_branch L_fzx{tag}
        L_nodec{tag}:
        """)
        flush()
        for j in range(8):
            A(f"v_mov_b32 v{ACC + j}, 0")
        A(f"""
        s_bitcmp1_b32 s{sLC}, 8
        s_cbranch_scc0 L_nosig{tag}
        v_mov_b32 v{TM + 1}, 1
        v_mov_b32 v{TM + 2}, 0
        s_mov_b64 exec, 1
        ds_add_u32 v{TM + 2}, v{TM + 1} offset:{L_MISC + 132}
        s_mov_b64 exec, -1
        L_nosig{tag}:
        s_and_b32 s{sLC}, s{sLC}, 7
        s_mov_b32 s{sAX}, s{sLC}
        L_fzx{tag}:
        """)

    for jv in range(8):
        vstep(jv)
    assert nxt[0] == 4 * (NH + 10), nxt
    A(f"ds_read_b128 v[{VE}:{VE + 3}], v{VTA}")
    for k in range(4):
        k1 = (k + 1) % 4
        A(f"""
        L_row{k}:
        s_waitcnt lgkmcnt(0)
        v_readfirstlane_b32 s{sNV}, v{VE}
        v_readfirstlane_b32 s{sNP}, v{VE + 1}
        v_readfirstlane_b32 s{sNX}, v{VE + 2}
        s_cmp_ge_u32 s{sNV}, -2
        s_cbranch_scc1 L_odd{k}
        v_add_u32 v{VTA}, 16, v{VTA}
        s_add_u32 s{sVOFF}, s{sNV}, s{sW13}
        v_add_u32 v{VPA}, s{sNP}, v{VG}
        ds_read_b128 v[{VE}:{VE + 3}], v{VTA}
        s_waitcnt vmcnt(4)
        """)
        vloads(RING + 32 * k1)
        A(f"""
        s_add_u32 s{sVOFF}, s{sVOFF}, 4096
        s_cmp_lg_u32 s{sLC}, s{sAX}
        s_cbranch_scc1 L_flush{k}
        L_fback{k}:
        """)
        vcompute(2 * k)
        pb = PB[(k + 1) % 2]
        A(f"ds_read_b128 v[{pb}:{pb + 3}], v{VPA}")
        A(f"ds_read_b128 v[{pb + 4}:{pb + 7}], v{VPA} offset:16")
        A("s_waitcnt vmcnt(4)")
        vloads(RING + 32 * k1 + 16)
        vcompute(2 * k + 1)
        A(f"s_mov_b32 s{sLC}, s{sNX}")
    A("s_branch L_row0")
    for k in range(4):
        A.label(f"L_flush{k}")
        A("s_nop 4")
        flushz(f"a{k}")
        A(f"s_branch L_fback{k}")
        A(f"""
        L_odd{k}:
        s_cmp_eq_u32 s{sNV}, -1
        s_cbranch_scc1 L_last{k}
        s_mov_b32 s{sSPIN}, 0
        L_pend{k}:
        ds_read_b128 v[{VE}:{VE + 3}], v{VTA}
        s_waitcnt lgkmcnt(0)
        v_readfirstlane_b32 s{sNV}, v{VE}
        s_add_u32 s{sSPIN}, s{sSPIN}, 1
        s_cmp_gt_u32 s{sSPIN}, {SPIN * 40}
        s_cbranch_scc1 L_last{k}
        s_cmp_eq_u32 s{sNV}, -2
        s_cbranch_scc1 L_pend{k}
        s_branch L_row{k}
        L_last{k}:
        s_cmp_eq_u32 s{sLC}, s{sAX}
        s_cbranch_scc1 L_last2{k}
        """)
        flushz(f"b{k}")
        A.label(f"L_last2{k}")
        A("s_waitcnt vmcnt(4)")
        vcompute(2 * k)
        A("s_waitcnt vmcnt(0)")
        vcompute(2 * k + 1)
        A("s_branch L_vdone")
    A.label("L_vdone")
    pstamp()
    if prog:
        A(f"""
        s_lshl_b32 s{sT0}, s2, 10
        s_lshl_b32 s{sT1}, s{sWAVE}, 8
        s_add_u32 s{sT0}, s{sT0}, s{sT1}
        s_add_u32 s{sT0}, s{sT0}, {STAMP_OFF + (1 << 20)}
        v_lshlrev_b32 v29, 2, v1
        v_add_u32 v29, s{sT0}, v29
        global_store_dword v29, v30, s[{sWS}:{sWS + 1}]
        """)
    A("s_nop 4")
    flush()
    A(f"""
    s_waitcnt lgkmcnt(0)
    s_barrier
    s_endpgm
    """)

    A.label("L_helper")
    W = 128
    if prio:
        A("s_setprio 3")
    stamp(2)
    L_XN4, L_QS = L_SC, L_SC + 8192
    C1, C2, DEC = L_MISC + 136, L_MISC + 140, L_MISC + 144

    def lds_spin(off, val, name, vz, vt):
        A(f"""
        s_mov_b32 s{sSPIN}, 0
        L_sp{name}:
        ds_read_b32 v{vt}, v{vz} offset:{off}
        s_waitcnt lgkmcnt(0)
        v_readfirstlane_b32 s{sT0}, v{vt}
        s_add_u32 s{sSPIN}, s{sSPIN}, 1
        s_cmp_gt_u32 s{sSPIN}, {SPIN * 40}
        s_cbranch_scc1 L_sp{name}_x
        s_cmp_lt_u32 s{sT0}, {val}
        s_cbranch_scc1 L_sp{name}
        L_sp{name}_x:
        """)

    A(f"""
    s_memrealtime s[{sTS}:{sTS + 1}]
    s_sub_u32 s{sHW}, s{sWAVE}, 4
    s_lshl_b32 s{sT0}, s{sHW}, 10
    v_add_u32 v7, s{sT0}, v2
    global_load_dwordx4 v[8:11], v7, s[{sX}:{sX + 1}]
    s_lshl_b32 s{sT0}, s{sH}, 8
    s_add_u32 s{SRD_T}, s{sWQ}, s{sT0}
    s_addc_u32 s{SRD_T + 1}, s{sWQ + 1}, 0
    s_sub_u32 s{SRD_T + 2}, 0x400000, s{sT0}
    s_cmp_lg_u32 s{sHALF}, 0
    s_cbranch_scc1 L_nopq
    s_lshl_b32 s{sT1}, s{sB}, 20
    s_lshl_b32 s{sT0}, s{sHW}, 18
    s_add_u32 s{sT1}, s{sT1}, s{sT0}       ; (128b + 32w')*8192
    v_lshlrev_b32 v7, 16, v5               ; 8g*8192
    v_lshl_add_u32 v7, v6, 4, v7
    """)
    for i in range(8):
        A(f"buffer_load_dwordx4 v[{W + 4 * i}:{W + 4 * i + 3}], v7, s[{SRD_T}:{SRD_T + 3}], s{sT1} offen nt")
        A(f"s_add_u32 s{sT1}, s{sT1}, 8192")
    A(f"""
    L_nopq:
    v_mov_b32 v12, 0
    v_mov_b32 v13, 0
    v_mov_b32 v14, 0
    v_mov_b32 v15, 0
    s_lshl_b32 s{sT0}, s{sHW}, 10
    v_add_u32 v16, s{sT0}, v2
    ds_write_b128 v16, v[12:15] offset:{L_ACC}
    ds_write_b128 v12, v[12:15] offset:{L_MISC + 128}
    ds_write_b128 v12, v[12:15] offset:{DEC}
    ds_write_b128 v2, v[12:15] offset:{L_QS}
    ds_write_b128 v2, v[12:15] offset:{L_QS + 1024}
    v_mov_b32 v63, 0
    s_waitcnt lgkmcnt(0)
    s_barrier
    s_cmp_lg_u32 s{sHALF}, 0
    s_cbranch_scc1 L_wx0
    s_waitcnt vmcnt(8)
    s_branch L_wx1
    L_wx0:
    s_waitcnt vmcnt(0)
    L_wx1:
    """)
    stamp(2)
    layernorm(8, 16, 24)
    A(f"""
    v_lshlrev_b32 v7, 5, v1
    s_lshl_b32 s{sT0}, s{sHW}, 11
    v_add_u32 v7, s{sT0}, v7
    ds_write_b128 v7, v[16:19] offset:{L_XN4}
    ds_write_b128 v7, v[20:23] offset:{L_XN4 + 16}
    v_mov_b32 v12, 1
    s_mov_b64 exec, 1
    ds_add_u32 v63, v12 offset:{C1}
    s_mov_b64 exec, -1
    """)
    stamp(2)
    A(f"""
    s_cmp_lg_u32 s{sHALF}, 0
    s_cbranch_scc1 L_pubx
    """)
    lds_spin(C1, 4, "c1a", 63, 12)
    A(f"""
    s_lshl_b32 s{sT0}, s{sB}, 9
    s_lshl_b32 s{sT1}, s{sHW}, 7
    s_add_u32 s{sT0}, s{sT0}, s{sT1}
    v_lshlrev_b32 v7, 5, v5
    v_add_u32 v7, s{sT0}, v7               ; (128b + 32w' + 8g)*4
    """)
    for bp in range(4):
        A(f"ds_read_b128 v[{64 + 8 * bp}:{67 + 8 * bp}], v7 offset:{L_XN4 + 2048 * bp}")
        A(f"ds_read_b128 v[{68 + 8 * bp}:{71 + 8 * bp}], v7 offset:{L_XN4 + 2048 * bp + 16}")
    AQ = 96
    for j in range(32):
        A(f"v_mov_b32 v{AQ + j}, 0")
    A("s_waitcnt lgkmcnt(0)")
    for i in range(8):
        A(f"s_waitcnt vmcnt({7 - i})")
        for bp in range(4):
            x = 64 + 8 * bp + i
            A(f"v_lshrrev_b32 v{30 + (bp & 1)}, 16, v{x}")
            for q in range(4):
                A(f"v_dot2c_f32_bf16 v{AQ + 8 * bp + 2 * q + 1}, v{W + 4 * i + q}, v{x}")
            for q in range(4):
                A(f"v_dot2c_f32_bf16 v{AQ + 8 * bp + 2 * q}, v{W + 4 * i + q}, v{30 + (bp & 1)}")
    stamp(2)
    for bp in range(4):
        reduce8(AQ + 8 * bp)
    A(f"""
    v_lshlrev_b32 v7, 5, v6
    v_lshl_add_u32 v7, v5, 2, v7
    """)
    for bp in range(4):
        A(f"ds_add_f32 v7, v{AQ + 8 * bp} offset:{L_QS + 512 * bp}")
        A(f"ds_add_f32 v7, v{AQ + 8 * bp + 4} offset:{L_QS + 512 * bp + 16}")
    A(f"""
    v_mov_b32 v12, 1
    s_mov_b64 exec, 1
    ds_add_rtn_u32 v13, v63, v12 offset:{C2}
    s_mov_b64 exec, -1
    s_waitcnt lgkmcnt(0)
    v_readfirstlane_b32 s{sT0}, v13
    s_cmp_lg_u32 s{sT0}, 3
    s_cbranch_scc1 L_pubx
    ds_read_b128 v[16:19], v2 offset:{L_QS}
    ds_read_b128 v[20:23], v2 offset:{L_QS + 1024}
    s_lshl_b32 s{sT0}, s{sH}, 2
    s_add_u32 s{sT0}, s{sT0}, s{sB}
    s_add_u32 s{sT2}, s{sT0}, 128
    s_lshl_b32 s{sT0}, s{sT0}, 11
    s_add_u32 s{sT0}, s{sT0}, {W_QP}
    s_getreg_b32 s{sT1}, hwreg(HW_REG_XCC_ID)
    s_and_b32 s{sT1}, s{sT1}, 15
    s_or_b32 s{sT1}, s{sT1}, 0x80
    v_mov_b32 v12, s{sT1}
    v_mov_b32 v13, s{sT2}
    s_waitcnt lgkmcnt(0)
    buffer_store_dwordx4 v[16:19], v2, s[{SRD_WS}:{SRD_WS + 3}], s{sT0} offen
    buffer_store_dwordx4 v[20:23], v2, s[{SRD_WS}:{SRD_WS + 3}], s{sT0} offen offset:1024
    s_mov_b64 exec, 1
    s_waitcnt vmcnt(0)
    global_store_byte v13, v12, s[{sDBG}:{sDBG + 1}]
    s_mov_b64 exec, -1
    L_pubx:
    """)
    stamp(2)
    A(f"""
    s_cmp_lg_u32 s{sHW}, 0
    s_cbranch_scc1 L_waitdec
    s_getreg_b32 s{sT1}, hwreg(HW_REG_XCC_ID)
    s_and_b32 s{sT1}, s{sT1}, 15
    s_or_b32 s{sT1}, s{sT1}, 0x80
    s_mul_i32 s{sT1}, s{sT1}, 0x01010101
    s_lshl_b32 s{sT0}, s{sH}, 2
    s_add_u32 s{sT0}, s{sT0}, 128
    v_mov_b32 v13, s{sT0}
    L_qf:
    global_load_dword v12, v13, s[{sDBG}:{sDBG + 1}] sc1
    s_memrealtime s[{sT2}:{sT3}]
    s_waitcnt vmcnt(0) lgkmcnt(0)
    v_readfirstlane_b32 s{sT0}, v12
    s_cmp_eq_u32 s{sT0}, s{sT1}
    s_cbranch_scc1 L_qok
    s_sub_u32 s{sT2}, s{sT2}, s{sTS}
    s_cmp_lt_u32 s{sT2}, {qto}
    s_cbranch_scc1 L_qf
    v_mov_b32 v12, 2
    ds_write_b32 v63, v12 offset:{DEC}
    s_branch L_qfb
    L_qok:
    v_mov_b32 v12, 1
    ds_write_b32 v63, v12 offset:{DEC}
    v_lshrrev_b32 v14, 5, v1
    v_and_b32 v15, 31, v1
    v_lshlrev_b32 v14, 11, v14
    v_lshl_add_u32 v14, v15, 4, v14
    s_lshl_b32 s{sT0}, s{sH}, 13
    s_lshl_b32 s{sT1}, s{sB}, 9
    s_add_u32 s{sT0}, s{sT0}, s{sT1}
    s_add_u32 s{sT0}, s{sT0}, {W_QP}
    s_add_u32 s{sT1}, s{sT0}, 4096
    buffer_load_dwordx4 v[16:19], v14, s[{SRD_WS}:{SRD_WS + 3}], s{sT0} offen sc1
    buffer_load_dwordx4 v[20:23], v14, s[{SRD_WS}:{SRD_WS + 3}], s{sT1} offen sc1
    s_waitcnt vmcnt(1)
    ds_write_b128 v2, v[16:19] offset:{L_QP}
    s_waitcnt vmcnt(0)
    ds_write_b128 v2, v[20:23] offset:{L_QP + 1024}
    s_branch L_qdone
    L_waitdec:
    """)
    lds_spin(DEC, 1, "dec", 63, 12)
    A(f"""
    s_cmp_eq_u32 s{sT0}, 1
    s_cbranch_scc1 L_qdone
    L_qfb:
    s_lshl_b32 s{sT1}, s{sHW}, 20          ; 128*w' rows * 8192
    v_lshlrev_b32 v7, 18, v5               ; 32*g*8192
    v_lshl_add_u32 v7, v6, 4, v7
    """)
    for i in range(32):
        A(f"buffer_load_dwordx4 v[{W + 4 * i}:{W + 4 * i + 3}], v7, s[{SRD_T}:{SRD_T + 3}], s{sT1} offen {qnt}")
        if i < 31:
            A(f"s_add_u32 s{sT1}, s{sT1}, 8192")
    lds_spin(C1, 4, "c1b", 63, 12)
    A(f"""
    s_lshl_b32 s{sT0}, s{sHW}, 9
    s_lshl_b32 s{sT1}, s{sB}, 11
    s_add_u32 s{sT0}, s{sT0}, s{sT1}
    v_lshlrev_b32 v7, 7, v5
    v_add_u32 v7, s{sT0}, v7               ; b*2048 + (128w'+32g)*4
    """)
    for n in range(8):
        A(f"ds_read_b128 v[{64 + 4 * n}:{67 + 4 * n}], v7 offset:{L_XN4 + 16 * n}")
    for j in range(8):
        A(f"v_mov_b32 v{32 + j}, 0")
    A("s_waitcnt lgkmcnt(0)")
    for i in range(32):
        if i % 4 == 0:
            A(f"s_waitcnt vmcnt({28 - i})")
        A(f"v_lshrrev_b32 v{30 + (i & 1)}, 16, v{64 + i}")
        for q in range(4):
            A(f"v_dot2c_f32_bf16 v{32 + 2 * q + 1}, v{W + 4 * i + q}, v{64 + i}")
        for q in range(4):
            A(f"v_dot2c_f32_bf16 v{32 + 2 * q}, v{W + 4 * i + q}, v{30 + (i & 1)}")
    reduce8(32)
    A(f"""
    v_lshlrev_b32 v7, 5, v6
    v_lshl_add_u32 v7, v5, 2, v7
    s_lshl_b32 s{sT0}, s{sHW}, 9
    v_add_u32 v7, s{sT0}, v7
    ds_write_b32 v7, v32 offset:{L_QP}
    ds_write_b32 v7, v36 offset:{L_QP + 16}
    L_qdone:
    s_waitcnt lgkmcnt(0)
    s_barrier
    """)
    stamp(0)
    A(f"""
    s_mov_b32 s{sTAIL}, s{sR}
    s_cmp_eq_u32 s{sXC}, 0
    s_cselect_b32 s{sTAIL}, s{sTAIL}, -1
    s_cmp_lg_u32 s{sHW}, 0
    s_cbranch_scc1 L_noclear
    v_mov_b32 v8, -1
    v_mov_b32 v9, -1
    v_mov_b32 v10, -1
    v_mov_b32 v11, -1
    s_lshl_b32 s{sT0}, s{sH}, 13
    s_and_b32 s{sT1}, s{sR}, 7
    s_lshl_b32 s{sT1}, s{sT1}, 10
    s_add_u32 s{sT0}, s{sT0}, s{sT1}
    s_add_u32 s{sT0}, s{sT0}, {W_Y}
    {'' if 'c' in skip else f'''buffer_store_dwordx4 v[8:11], v2, s[{SRD_WS}:{SRD_WS + 3}], s{sT0} offen sc1'''}
    s_mov_b32 exec_lo, -1
    s_mov_b32 exec_hi, 0
    s_lshl_b32 s{sT0}, s2, 9
    s_add_u32 s{sT0}, s{sT0}, {W_OT}
    buffer_store_dwordx4 v[8:11], v2, s[{SRD_WS}:{SRD_WS + 3}], s{sT0} offen sc1
    s_mov_b64 exec, 1
    s_lshl_b32 s{sT0}, s{sR}, 7
    s_lshl_b32 s{sT1}, s{sXC}, 2
    s_add_u32 s{sT0}, s{sT0}, s{sT1}
    s_add_u32 s{sT0}, s{sT0}, {W_TM}
    buffer_store_dword v8, v2, s[{SRD_WS}:{SRD_WS + 3}], s{sT0} offen sc1
    s_getreg_b32 s{sT1}, hwreg(HW_REG_XCC_ID)
    s_and_b32 s{sT1}, s{sT1}, 15
    v_mov_b32 v12, s{sT1}
    s_lshl_b32 s{sT0}, s{sH}, 5
    s_and_b32 s{sT1}, s{sR}, 7
    s_lshl_b32 s{sT1}, s{sT1}, 2
    s_add_u32 s{sT0}, s{sT0}, s{sT1}
    s_add_u32 s{sT0}, s{sT0}, {W_XID + 1024}
    buffer_store_dword v12, v2, s[{SRD_WS}:{SRD_WS + 3}], s{sT0} offen sc1
    s_mov_b64 exec, 0xf
    s_lshl_b32 s{sT0}, s2, 7
    s_add_u32 s{sT1}, s{sT0}, {W_CNT}
    buffer_store_dwordx4 v[8:11], v2, s[{SRD_WS}:{SRD_WS + 3}], s{sT1} offen sc1
    s_mov_b64 exec, 0xff
    s_add_u32 s{sT0}, s{sT0}, {W_ML}
    {'' if 'c' in skip else f'''buffer_store_dwordx4 v[8:11], v2, s[{SRD_WS}:{SRD_WS + 3}], s{sT0} offen sc1'''}
    s_cmp_lg_u32 s{sXC}, 0
    s_cbranch_scc1 L_noclear2
    s_lshl_b32 s{sT0}, s{sR}, 7
    s_add_u32 s{sT0}, s{sT0}, {W_H}
    {'' if 'c' in skip else f'''buffer_store_dwordx4 v[8:11], v2, s[{SRD_WS}:{SRD_WS + 3}], s{sT0} offen sc1'''}
    s_mov_b64 exec, -1
    s_lshl_b32 s{sT0}, s{sR}, 13
    s_add_u32 s{sT0}, s{sT0}, {W_PO}
    s_add_u32 s{sT1}, s{sT0}, 4096
    {'' if 'c' in skip else f'''buffer_store_dwordx4 v[8:11], v2, s[{SRD_WS}:{SRD_WS + 3}], s{sT0} offen sc1'''}
    {'' if 'c' in skip else f'''buffer_store_dwordx4 v[8:11], v2, s[{SRD_WS}:{SRD_WS + 3}], s{sT0} offen offset:1024 sc1'''}
    {'' if 'c' in skip else f'''buffer_store_dwordx4 v[8:11], v2, s[{SRD_WS}:{SRD_WS + 3}], s{sT0} offen offset:2048 sc1'''}
    {'' if 'c' in skip else f'''buffer_store_dwordx4 v[8:11], v2, s[{SRD_WS}:{SRD_WS + 3}], s{sT0} offen offset:3072 sc1'''}
    {'' if 'c' in skip else f'''buffer_store_dwordx4 v[8:11], v2, s[{SRD_WS}:{SRD_WS + 3}], s{sT1} offen sc1'''}
    {'' if 'c' in skip else f'''buffer_store_dwordx4 v[8:11], v2, s[{SRD_WS}:{SRD_WS + 3}], s{sT1} offen offset:1024 sc1'''}
    {'' if 'c' in skip else f'''buffer_store_dwordx4 v[8:11], v2, s[{SRD_WS}:{SRD_WS + 3}], s{sT1} offen offset:2048 sc1'''}
    {'' if 'c' in skip else f'''buffer_store_dwordx4 v[8:11], v2, s[{SRD_WS}:{SRD_WS + 3}], s{sT1} offen offset:3072 sc1'''}
    s_mov_b64 exec, 1
    s_getreg_b32 s{sT1}, hwreg(HW_REG_XCC_ID)
    s_and_b32 s{sT1}, s{sT1}, 15
    v_mov_b32 v12, s{sT1}
    s_lshl_b32 s{sT0}, s{sR}, 2
    s_add_u32 s{sT0}, s{sT0}, {W_XID}
    buffer_store_dword v12, v2, s[{SRD_WS}:{SRD_WS + 3}], s{sT0} offen sc1
    L_noclear2:
    s_mov_b64 exec, 1
    v_mov_b32 v12, 1
    v_mov_b32 v13, 0
    s_waitcnt vmcnt(0)
    global_atomic_add v13, v12, s[{sDBG}:{sDBG + 1}]
    s_mov_b64 exec, -1
    L_noclear:
    """)
    A(f"""
    s_lshl_b32 s{sT0}, s{sH}, 17
    s_and_b32 s{sT1}, s{sR}, 7
    s_lshl_b32 s{sT1}, s{sT1}, 7
    s_add_u32 s{sT0}, s{sT0}, s{sT1}
    s_add_u32 s{SRD_T}, s{sWO}, s{sT0}
    s_addc_u32 s{SRD_T + 1}, s{sWO + 1}, 0
    s_sub_u32 s{SRD_T + 2}, 0x400000, s{sT0}
    v_lshrrev_b32 v8, 3, v1
    v_and_b32 v9, 7, v1
    v_lshlrev_b32 v7, 10, v8
    v_lshl_add_u32 v7, v9, 4, v7
    s_lshl_b32 s{sT1}, s{sHW}, 15          ; 32 w' rows * 1024
    """)
    for i in range(4):
        A(f"buffer_load_dwordx4 v[{W + 4 * i}:{W + 4 * i + 3}], v7, s[{SRD_T}:{SRD_T + 3}], s{sT1} offen {WNT}")
        A(f"s_add_u32 s{sT1}, s{sT1}, 8192")
    A(f"""
    v_mul_u32_u24 v7, {WO_P}, v8
    v_lshl_add_u32 v7, v9, 4, v7
    s_mul_i32 s{sT0}, s{sHW}, {32 * WO_P}
    s_add_u32 s{sT0}, s{sT0}, {L_WO}
    v_add_u32 v7, s{sT0}, v7
    """)
    for i in range(4):
        A(f"s_waitcnt vmcnt({3 - i})")
        A(f"ds_write_b128 v7, v[{W + 4 * i}:{W + 4 * i + 3}] offset:{8 * WO_P * i}")
    F1 = 128
    F2 = 64
    XR = 63
    A(f"""
    s_cmp_lg_u32 s{sXC}, 0
    s_cbranch_scc1 L_noffn
    s_lshl_b32 s{sT0}, s{sR}, 5
    v_lshlrev_b32 v8, 10, v5
    v_lshl_add_u32 v8, v6, 1, v8
    v_add_u32 v8, s{sT0}, v8
    global_load_ushort v{XR}, v8, s[{sX}:{sX + 1}]
    s_cmp_ge_u32 s{sR}, {0 if 'f' in skip else 28}
    s_cbranch_scc1 L_noffn1
    s_waitcnt lgkmcnt(0)
    s_mov_b32 s{SRD_T}, s{sWD}
    s_mov_b32 s{SRD_T + 1}, s{sWD + 1}
    s_mov_b32 s{SRD_T + 2}, {1792 * 1024}
    v_lshlrev_b32 v7, 10, v5
    v_lshl_add_u32 v7, v6, 4, v7           ; g*1024 + c*16
    s_lshl_b32 s{sT0}, s{sR}, 16
    s_lshl_b32 s{sT1}, s{sHW}, 8
    s_add_u32 s{sT1}, s{sT1}, s{sT0}
    """)
    for i in range(16):
        A(f"buffer_load_dwordx4 v[{F2 + 4 * i}:{F2 + 4 * i + 3}], v7, s[{SRD_T}:{SRD_T + 3}], s{sT1} offen {WNT}")
        A(f"s_add_u32 s{sT1}, s{sT1}, 4096")
    A(f"""
    v_lshrrev_b32 v8, 3, v1
    v_and_b32 v9, 7, v1
    v_mul_u32_u24 v7, 3584, v8
    v_lshl_add_u32 v7, v9, 4, v7
    s_mov_b32 s{SRD_T + 2}, {512 * 3584}
    """)
    for m, sp in enumerate((sWG, sWU)):
        A(f"""
        s_mov_b32 s{SRD_T}, s{sp}
        s_mov_b32 s{SRD_T + 1}, s{sp + 1}
        s_mul_i32 s{sT1}, s{sHW}, {128 * 3584}
        s_lshl_b32 s{sT0}, s{sR}, 7
        s_add_u32 s{sT1}, s{sT1}, s{sT0}
        """)
        for i in range(16):
            r = F1 + 64 * m + 4 * i
            A(f"buffer_load_dwordx4 v[{r}:{r + 3}], v7, s[{SRD_T}:{SRD_T + 3}], s{sT1} offen {WNT}")
            A(f"s_add_u32 s{sT1}, s{sT1}, {8 * 3584}")
    A(f"""
    s_mul_i32 s{sT0}, s{sHW}, {STG_SZ}
    s_add_u32 s{sT0}, s{sT0}, {L_STG}
    v_mul_u32_u24 v10, 288, v5
    v_lshl_add_u32 v10, v6, 4, v10
    v_add_u32 v10, s{sT0}, v10             ; wd staging write: g*288 + c*16
    v_mul_u32_u24 v11, 160, v8
    v_lshl_add_u32 v11, v9, 4, v11
    v_add_u32 v11, s{sT0}, v11             ; g/u staging write: (l>>3)*160 + (l&7)*16
    v_lshrrev_b32 v12, 2, v6
    v_lshl_add_u32 v12, v5, 2, v12         ; row = 4g + (c>>2)
    v_and_b32 v13, 3, v6
    v_lshlrev_b32 v13, 3, v13
    v_add_u32 v13, s{sT0}, v13
    v_mad_u32_u24 v14, v12, 288, v13       ; invalid literal? replaced below
    """.replace("v_mad_u32_u24 v14, v12, 288, v13       ; invalid literal? replaced below",
                "v_mul_u32_u24 v14, 288, v12\nv_add_u32 v14, v14, v13\nv_mul_u32_u24 v15, 160, v12\nv_add_u32 v15, v15, v13"))
    for ks in range(2):
        A(f"s_waitcnt vmcnt({32 + 8 - 8 * ks})")
        for i in range(8):
            r = F2 + 32 * ks + 4 * i
            A(f"ds_write_b128 v10, v[{r}:{r + 3}] offset:{4 * 288 * i}")
        for nt in range(8):
            r = F2 + 32 * ks + 4 * nt
            A(f"ds_read_b64_tr_b16 v[{r}:{r + 1}], v14 offset:{32 * nt}")
            A(f"ds_read_b64_tr_b16 v[{r + 2}:{r + 3}], v14 offset:{16 * 288 + 32 * nt}")
    for ms in range(8):
        A(f"s_waitcnt vmcnt({28 - 4 * ms})")
        for i in range(4):
            r = F1 + 16 * ms + 4 * i
            A(f"ds_write_b128 v11, v[{r}:{r + 3}] offset:{8 * 160 * i}")
        for nt in range(4):
            r = F1 + 16 * ms + 4 * nt
            A(f"ds_read_b64_tr_b16 v[{r}:{r + 1}], v15 offset:{32 * nt}")
            A(f"ds_read_b64_tr_b16 v[{r + 2}:{r + 3}], v15 offset:{16 * 160 + 32 * nt}")
    A(f"""
    L_noffn1:
    s_waitcnt vmcnt(0)
    L_noffn:
    s_waitcnt lgkmcnt(0)
    """)
    A(f"""
    s_mov_b32 s{sLOCH}, 0
    s_cmp_lg_u32 s{sHW}, 0
    s_cbranch_scc1 L_noarr
    v_add_u32 v8, 5, v1
    v_lshlrev_b32 v9, 9, v8
    v_lshlrev_b32 v8, 15, v8
    s_lshl_b32 s{sT0}, s{sXC}, 21
    v_add_u32 v8, s{sT0}, v8
    v_add_u32 v9, {L_SC}, v9
    v_mov_b32 v10, s{sXC}
    s_or_b32 s{sT0}, s{sXC}, 0x200
    v_mov_b32 v11, s{sT0}
    v_cmp_eq_u32 vcc, {drow - 5 if drow else 63}, v1
    v_cndmask_b32 v10, v10, v11, vcc
    v_mov_b32 v11, 0
    v_cmp_gt_u32 vcc, {PST - 5}, v1
    v_cndmask_b32 v8, -2, v8, vcc
    v_add_u32 v12, {L_TAB}, v2
    ds_write_b128 v12, v[8:11]
    v_mov_b32 v17, 0
    s_mov_b32 s{sSPIN}, 0
    {chr(10).join(['s_sleep 127'] * apre)}
    L_arr:
    {'s_sleep ' + str(asleep) if asleep else ''}
    global_load_dword v24, v17, s[{sDBG}:{sDBG + 1}] sc1
    s_waitcnt vmcnt(0)
    v_readfirstlane_b32 s{sT0}, v24
    s_add_u32 s{sSPIN}, s{sSPIN}, 1
    s_cmp_gt_u32 s{sSPIN}, {SPIN}
    s_cbranch_scc1 L_noarr
    s_cmp_lt_u32 s{sT0}, 256
    s_cbranch_scc1 L_arr
    v_and_b32 v8, 7, v1
    v_lshlrev_b32 v8, 2, v8
    s_lshl_b32 s{sT0}, s{sH}, 5
    s_add_u32 s{sT0}, s{sT0}, {W_XID + 1024}
    buffer_load_dword v9, v8, s[{SRD_WS}:{SRD_WS + 3}], s{sT0} offen sc1
    s_waitcnt vmcnt(0)
    v_readfirstlane_b32 s{sT1}, v9
    v_cmp_ne_u32 vcc, s{sT1}, v9
    s_cmp_eq_u64 vcc, 0
    s_cselect_b32 s{sLOCH}, {1 if local else 0}, 0
    L_noarr:
    s_waitcnt lgkmcnt(0)
    """)
    stamp()
    TMPUB = f"""
    s_mov_b64 exec, 1
    s_and_b32 s{sT2}, s{sTS}, 0x7fffffff
    v_mov_b32 v30, 0
    v_mov_b32 v24, s{sT2}
    s_lshl_b32 s{sT0}, s{sR}, 7
    s_lshl_b32 s{sT1}, s{sXC}, 2
    s_add_u32 s{sT0}, s{sT0}, s{sT1}
    s_add_u32 s{sT0}, s{sT0}, {W_TM}
    buffer_store_dword v24, v30, s[{SRD_WS}:{SRD_WS + 3}], s{sT0} offen sc1
    s_mov_b64 exec, -1
    """
    TMPUB0 = '' if drow else TMPUB
    midphase_common(8, 16)
    stamp()
    A(f"""
    s_cmp_lg_u32 s{sHW}, 0
    s_cbranch_scc1 L_noex
    s_memrealtime s[{sTS}:{sTS + 1}]
    ds_read_b128 v[24:27], v17 offset:{L_MISC + 32}
    ds_read_b128 v[28:31], v17 offset:{L_MISC + 48}
    s_waitcnt lgkmcnt(0)
    v_add_f32 v24, v24, v25
    v_add_f32 v26, v26, v27
    v_add_f32 v28, v28, v29
    v_add_f32 v30, v30, v31
    v_add_f32 v24, v24, v26
    v_add_f32 v28, v28, v30
    v_add_f32 v21, v24, v28
    s_mov_b64 exec, 1
    s_lshl_b32 s{sT0}, s2, 7
    s_add_u32 s{sT0}, s{sT0}, {W_ML}
    """)
    pub_store([f"buffer_store_dwordx2 v[20:21], v17, s[{SRD_WS}:{SRD_WS + 3}], s{sT0} offen"], sLOCH)
    A(f"""
    s_mov_b64 exec, -1
    {TMPUB0}
    s_xor_b32 s{sT1}, s2, 8
    s_lshl_b32 s{sT1}, s{sT1}, 7
    s_add_u32 s{sT1}, s{sT1}, {W_ML}
    """)
    poll([f"buffer_load_dwordx2 v[24:25], v17, s[{SRD_WS}:{SRD_WS + 3}], s{sT1} offen sc1"], [24, 25], "ml")
    A(f"""
    v_max_f32 v26, v20, v24            ; m
    v_sub_f32 v27, v20, v26
    v_sub_f32 v28, v24, v26
    v_mul_f32 v27, s{sLOG2E}, v27
    v_mul_f32 v28, s{sLOG2E}, v28
    v_exp_f32 v27, v27
    v_exp_f32 v28, v28
    v_mul_f32 v29, v21, v27
    v_mul_f32 v30, v25, v28
    v_add_f32 v29, v29, v30            ; l
    v_rcp_f32 v30, v29
    v_mul_f32 v31, v27, v30
    v_fma_f32 v24, -v31, v29, v27
    v_fma_f32 v31, v24, v30, v31       ; c = f/l
    ds_write_b32 v17, v31 offset:{L_MISC + 64}
    s_waitcnt lgkmcnt(0)
    L_noex:
    """)
    stamp()
    midphase_end(8, 16)
    if local:
        A(f"""
        s_mov_b32 s{sLOCAL}, 0
        s_cmp_lg_u32 s{sXC}, 0
        s_cbranch_scc1 L_noloc
        v_and_b32 v8, 31, v1
        v_lshlrev_b32 v8, 2, v8
        s_mov_b32 s{sT0}, {W_XID}
        buffer_load_dword v9, v8, s[{SRD_WS}:{SRD_WS + 3}], s{sT0} offen sc1
        s_waitcnt vmcnt(0)
        v_readfirstlane_b32 s{sT1}, v9
        v_cmp_ne_u32 vcc, s{sT1}, v9
        s_cmp_eq_u64 vcc, 0
        s_cselect_b32 s{sLOCAL}, 1, 0
        L_noloc:
        """)
    sD0, sDN, sR0, sRN, sE, sJ, sMK, sKK = 66, 67, 68, 69, 71, 100, 101, 58
    A(f"""
    s_cmp_lg_u32 s{sHW}, 0
    s_cbranch_scc1 L_noplan
    """)
    if drow:
        A(f"""
        v_mov_b32 v30, 0
        s_mov_b32 s{sSPIN}, 0
        L_wdec:
        s_sleep 2
        ds_read_b32 v19, v30 offset:{L_MISC + 148}
        s_waitcnt lgkmcnt(0)
        v_readfirstlane_b32 s{sT0}, v19
        s_add_u32 s{sSPIN}, s{sSPIN}, 1
        s_cmp_gt_u32 s{sSPIN}, {SPIN * 20}
        s_cbranch_scc1 L_wdecx
        s_cmp_eq_u32 s{sT0}, 0
        s_cbranch_scc1 L_wdec
        L_wdecx:
        s_memrealtime s[{sTS}:{sTS + 1}]
        s_waitcnt lgkmcnt(0)
        """)
        A(TMPUB)
    A(f"""
    v_and_b32 v8, 7, v1
    v_lshlrev_b32 v9, 2, v8
    s_lshl_b32 s{sT0}, s{sR}, 7
    s_add_u32 s{sT0}, s{sT0}, {W_TM}
    """)
    poll([f"buffer_load_dword v10, v9, s[{SRD_WS}:{SRD_WS + 3}], s{sT0} offen sc1"], [10], "tm", sleep=tsl)
    A(f"""
    v_readfirstlane_b32 s{sT0}, v10
    v_subrev_u32 v10, s{sT0}, v10
    v_lshlrev_b32 v10, 1, v10
    v_ashrrev_i32 v10, 1, v10
    v_cvt_f32_i32 v10, v10
    v_add_f32_dpp v11, v10, v10 row_ror:1 row_mask:0xf bank_mask:0xf
    v_add_f32_dpp v11, v11, v11 row_ror:2 row_mask:0xf bank_mask:0xf
    v_add_f32_dpp v11, v11, v11 row_ror:4 row_mask:0xf bank_mask:0xf
    v_readfirstlane_b32 s{sT0}, v11
    v_mov_b32 v11, s{sT0}
    s_mov_b32 s{sT1}, 0xbe000000
    v_fma_f32 v10, v11, s{sT1}, v10        ; t - mean
    v_mul_f32 v10, 0x{ROWRATE:08x}, v10
    v_rndne_f32 v10, v10
    v_cvt_i32_f32 v10, v10
    v_max_i32 v11, 0, v10
    v_min_i32 v11, {GMAX}, v11             ; d
    v_sub_u32 v12, 0, v10
    v_max_i32 v12, 0, v12
    v_min_i32 v12, {GMAX}, v12             ; r
    v_cmp_gt_u32 vcc, 8, v1
    v_cndmask_b32 v11, 0, v11, vcc
    v_cndmask_b32 v12, 0, v12, vcc
    v_mov_b32 v13, v11
    v_mov_b32 v14, v12
    """)
    for sh_ in (1, 2, 4):
        A(f"v_add_u32_dpp v13, v13, v13 row_shr:{sh_} row_mask:0xf bank_mask:0xf bound_ctrl:0")
        A(f"v_add_u32_dpp v14, v14, v14 row_shr:{sh_} row_mask:0xf bank_mask:0xf bound_ctrl:0")
    A(f"""
    v_readlane_b32 s{sT0}, v13, 7
    v_readlane_b32 s{sT1}, v14, 7
    v_sub_u32 v13, v13, v11                ; D excl
    v_sub_u32 v14, v14, v12                ; R excl
    s_min_u32 s{sT0}, s{sT0}, s{sT1}
    v_sub_u32 v15, s{sT0}, v13
    v_max_i32 v15, 0, v15
    v_min_i32 v11, v11, v15                ; d'
    v_sub_u32 v15, s{sT0}, v14
    v_max_i32 v15, 0, v15
    v_min_i32 v12, v12, v15                ; r'
    v_add_u32 v16, v13, v11                ; D end
    v_add_u32 v17, v14, v12                ; R end
    v_readlane_b32 s{sD0}, v13, s{sXC}
    v_readlane_b32 s{sDN}, v11, s{sXC}
    v_readlane_b32 s{sR0}, v14, s{sXC}
    v_readlane_b32 s{sRN}, v12, s{sXC}
    v_mov_b32 v30, 0
    v_mov_b32 v31, {L_TAB + (PST - 5) * 16}
    s_mov_b32 s{sMK}, 0
    s_cmp_eq_u32 s{sDN}, 0
    s_cbranch_scc1 L_nodon
    s_lshl_b32 s{sT0}, s2, 12
    s_add_u32 s{sT0}, s{sT0}, {W_P}
    """)
    NK = (GMAX + 1) // 2
    for k in range(NK):
        A(f"ds_read_b128 v[{32 + 4 * k}:{35 + 4 * k}], v2 offset:{L_SC + (30 - 2 * k) * 512}")
    A("s_waitcnt lgkmcnt(0)")
    for k in range(NK):
        if k:
            A(f"s_cmp_le_u32 s{sDN}, {2 * k}")
            A("s_cbranch_scc1 L_donx")
        A(f"buffer_store_dwordx4 v[{32 + 4 * k}:{35 + 4 * k}], v2, s[{SRD_WS}:{SRD_WS + 3}], s{sT0} offen offset:{(6 - 2 * k) * 512} sc1")
    A(f"""
    L_donx:
    s_mov_b64 exec, 1
    s_lshl_b32 s{sT0}, s2, 7
    s_add_u32 s{sT0}, s{sT0}, {W_CNT + 16}
    s_waitcnt vmcnt(0)
    buffer_store_dword v30, v30, s[{SRD_WS}:{SRD_WS + 3}], s{sT0} offen sc1
    s_mov_b64 exec, -1
    L_nodon:
    v_and_b32 v18, 31, v1
    v_lshlrev_b32 v18, 4, v18
    v_lshlrev_b32 v25, 9, v1
    v_add_u32 v25, {L_EXT}, v25
    v_mov_b32 v24, 0
    v_mov_b32 v26, 0
    v_mov_b32 v27, 0
    s_cmp_eq_u32 s{sRN}, 0
    s_cbranch_scc1 L_rcvx
    """)
    for e in range(GMAX):
        if e:
            A(f"s_cmp_le_u32 s{sRN}, {e}")
            A("s_cbranch_scc1 L_rcvy")
        A(f"""
        s_add_u32 s{sKK}, s{sR0}, {e}
        v_cmp_ge_u32 vcc, s{sKK}, v13
        v_cmp_lt_u32 s[{sT2}:{sT3}], s{sKK}, v16
        s_and_b64 vcc, vcc, s[{sT2}:{sT3}]
        s_and_b32 s{sT0}, vcc_lo, 0xff
        s_ff1_i32_b32 s{sJ}, s{sT0}
        s_and_b32 s{sJ}, s{sJ}, 7
        v_readlane_b32 s{sT0}, v13, s{sJ}
        s_sub_u32 s{sKK}, s{sKK}, s{sT0}
        s_sub_u32 s{sKK}, 31, s{sKK}
        s_lshl_b32 s{sT0}, s{sR}, 3
        s_add_u32 s{sE}, s{sT0}, s{sJ}
        s_bitcmp1_b32 s{sMK}, s{sJ}
        s_cbranch_scc1 L_nopf{e}
        s_bitset1_b32 s{sMK}, s{sJ}
        s_lshl_b32 s{sT0}, s{sE}, 7
        s_add_u32 s{sT0}, s{sT0}, {W_CNT + 16}
        s_mov_b32 s{sSPIN}, 0
        L_pf{e}:
        buffer_load_dword v19, v30, s[{SRD_WS}:{SRD_WS + 3}], s{sT0} offen sc1
        s_waitcnt vmcnt(0)
        v_readfirstlane_b32 s{sT1}, v19
        s_add_u32 s{sSPIN}, s{sSPIN}, 1
        s_cmp_gt_u32 s{sSPIN}, {SPIN}
        s_cbranch_scc1 L_nopf{e}
        s_cmp_eq_u32 s{sT1}, -1
        s_cbranch_scc1 L_pf{e}
        L_nopf{e}:
        s_lshl_b32 s{sT1}, s{sE}, 12
        s_lshl_b32 s{sT0}, s{sKK}, 9
        s_add_u32 s{sT1}, s{sT1}, s{sT0}
        s_add_u32 s{sT1}, s{sT1}, {W_P - 24 * 512}
        buffer_load_dwordx4 v[{32 + 4 * e}:{35 + 4 * e}], v18, s[{SRD_WS}:{SRD_WS + 3}], s{sT1} offen sc1
        s_lshl_b32 s{sKK}, s{sKK}, 15
        s_lshl_b32 s{sT0}, s{sJ}, 21
        s_add_u32 s{sKK}, s{sKK}, s{sT0}
        v_writelane_b32 v24, s{sKK}, {e}
        v_writelane_b32 v26, s{sJ}, {e}
        """)
    A(f"""
    L_rcvy:
    v_add_u32 v19, {L_EXT}, v18
    s_waitcnt vmcnt(0)
    """)
    for e in range(GMAX):
        A(f"ds_write_b128 v19, v[{32 + 4 * e}:{35 + 4 * e}] offset:{512 * e}")
    A(f"""
    v_add_u32 v19, v31, v2
    s_lshl_b32 s{sT0}, 1, s{sRN}
    s_sub_u32 s{sT0}, s{sT0}, 1
    s_mov_b32 exec_lo, s{sT0}
    s_mov_b32 exec_hi, 0
    ds_write_b128 v19, v[24:27]
    s_mov_b64 exec, -1
    s_lshl_b32 s{sT0}, s{sRN}, 4
    v_add_u32 v31, s{sT0}, v31
    L_rcvx:
    v_add_u32 v24, {PST}, v1
    v_lshlrev_b32 v25, 9, v24
    v_lshlrev_b32 v24, 15, v24
    s_lshl_b32 s{sT0}, s{sXC}, 21
    v_add_u32 v24, s{sT0}, v24
    v_add_u32 v25, {L_SC}, v25
    s_or_b32 s{sT1}, s{sXC}, 0x100
    v_mov_b32 v26, s{sXC}
    v_mov_b32 v28, s{sT1}
    v_cmp_eq_u32 vcc, 0, v1
    v_cndmask_b32 v26, v26, v28, vcc
    s_cmp_eq_u32 s{sRN}, 0
    s_cbranch_scc0 L_keepflag
    v_mov_b32 v26, s{sXC}
    L_keepflag:
    v_mov_b32 v27, 0
    s_sub_u32 s{sT0}, {32 - PST}, s{sDN}
    v_cmp_gt_u32 vcc, s{sT0}, v1
    v_cndmask_b32 v24, -1, v24, vcc
    v_add_u32 v19, v31, v2
    s_mov_b64 exec, 0x{(1 << (33 - PST)) - 1:x}
    ds_write_b128 v19, v[24:27]
    s_mov_b64 exec, -1
    s_cmp_eq_u32 s{sRN}, 0
    s_cbranch_scc1 L_nosend
    s_mov_b32 s{sSPIN}, 0
    L_wsig:
    s_sleep 4
    ds_read_b32 v19, v30 offset:{L_MISC + 132}
    s_waitcnt lgkmcnt(0)
    v_readfirstlane_b32 s{sT0}, v19
    s_add_u32 s{sSPIN}, s{sSPIN}, 1
    s_cmp_gt_u32 s{sSPIN}, {SPIN * 20}
    s_cbranch_scc1 L_snd
    s_cmp_lt_u32 s{sT0}, 4
    s_cbranch_scc1 L_wsig
    L_snd:
    s_ff1_i32_b32 s{sJ}, s{sMK}
    s_lshl_b32 s{sT0}, 1, s{sJ}
    s_xor_b32 s{sMK}, s{sMK}, s{sT0}
    s_lshl_b32 s{sT0}, s{sJ}, 9
    v_add_u32 v19, s{sT0}, v18
    ds_read_b128 v[20:23], v19 offset:{L_ACC}
    s_lshl_b32 s{sT0}, s{sR}, 3
    s_add_u32 s{sT0}, s{sT0}, s{sJ}
    s_lshl_b32 s{sT0}, s{sT0}, 12
    s_lshl_b32 s{sT1}, s{sXC}, 9
    s_add_u32 s{sT0}, s{sT0}, s{sT1}
    s_add_u32 s{sT0}, s{sT0}, {W_O}
    s_mov_b32 exec_hi, 0
    s_waitcnt lgkmcnt(0)
    buffer_store_dwordx4 v[20:23], v18, s[{SRD_WS}:{SRD_WS + 3}], s{sT0} offen sc1
    s_lshl_b32 s{sT0}, s{sR}, 3
    s_add_u32 s{sT0}, s{sT0}, s{sJ}
    s_lshl_b32 s{sT0}, s{sT0}, 7
    s_lshl_b32 s{sT1}, s{sXC}, 2
    s_add_u32 s{sT0}, s{sT0}, s{sT1}
    s_add_u32 s{sT0}, s{sT0}, {W_CNT + 32}
    s_mov_b64 exec, 1
    s_waitcnt vmcnt(0)
    buffer_store_dword v30, v30, s[{SRD_WS}:{SRD_WS + 3}], s{sT0} offen sc1
    s_mov_b64 exec, -1
    s_cmp_lg_u32 s{sMK}, 0
    s_cbranch_scc1 L_snd
    L_nosend:
    s_cmp_eq_u32 s{sDN}, 0
    s_cbranch_scc1 L_noplan
    s_add_u32 s{sT0}, s{sD0}, s{sDN}
    v_cmp_gt_u32 vcc, s{sT0}, v14
    v_cmp_lt_u32 s[{sT2}:{sT3}], s{sD0}, v17   ; D0 < R end
    s_and_b64 vcc, vcc, s[{sT2}:{sT3}]
    v_cmp_lt_u32 s[{sT2}:{sT3}], 0, v12
    s_and_b64 vcc, vcc, s[{sT2}:{sT3}]
    s_and_b32 s{sMK}, vcc_lo, 0xff
    s_lshl_b32 s{sT0}, s{sXC}, 9
    v_add_u32 v29, s{sT0}, v18
    L_col:
    s_ff1_i32_b32 s{sJ}, s{sMK}
    s_lshl_b32 s{sT0}, 1, s{sJ}
    s_xor_b32 s{sMK}, s{sMK}, s{sT0}
    s_lshl_b32 s{sT0}, s2, 7
    s_lshl_b32 s{sT1}, s{sJ}, 2
    s_add_u32 s{sT0}, s{sT0}, s{sT1}
    s_add_u32 s{sT0}, s{sT0}, {W_CNT + 32}
    """)
    poll([f"buffer_load_dword v19, v30, s[{SRD_WS}:{SRD_WS + 3}], s{sT0} offen sc1"], [19], "in", sleep=isl)
    A(f"""
    s_lshl_b32 s{sT0}, s2, 12
    s_lshl_b32 s{sT1}, s{sJ}, 9
    s_add_u32 s{sT0}, s{sT0}, s{sT1}
    s_add_u32 s{sT0}, s{sT0}, {W_O}
    buffer_load_dwordx4 v[20:23], v18, s[{SRD_WS}:{SRD_WS + 3}], s{sT0} offen sc1
    s_waitcnt vmcnt(0)
    s_mov_b32 exec_hi, 0
    ds_add_f32 v29, v20 offset:{L_ACC}
    ds_add_f32 v29, v21 offset:{L_ACC + 4}
    ds_add_f32 v29, v22 offset:{L_ACC + 8}
    ds_add_f32 v29, v23 offset:{L_ACC + 12}
    s_mov_b64 exec, -1
    s_cmp_lg_u32 s{sMK}, 0
    s_waitcnt lgkmcnt(0)
    s_cbranch_scc1 L_col
    L_noplan:
    s_waitcnt lgkmcnt(0)
    """)
    WF = 40
    HK = 62
    A(f"""
    v_lshrrev_b32 v8, 2, v6                ; i>>2
    v_lshl_add_u32 v8, v5, 2, v8           ; row = 4g + (i>>2)
    v_mul_u32_u24 v8, {WO_P}, v8
    v_and_b32 v9, 3, v6
    v_lshl_add_u32 v8, v9, 3, v8
    s_lshl_b32 s{sT0}, s{sHW}, 5
    s_add_u32 s{sT0}, s{sT0}, {L_WO}
    v_add_u32 v8, s{sT0}, v8
    """)
    for s_ in range(4):
        A(f"ds_read_b64_tr_b16 v[{WF + 4 * s_}:{WF + 4 * s_ + 1}], v8 offset:{32 * s_ * WO_P}")
        A(f"ds_read_b64_tr_b16 v[{WF + 4 * s_ + 2}:{WF + 4 * s_ + 3}], v8 offset:{(32 * s_ + 16) * WO_P}")
    A(f"""
    v_lshrrev_b32 v10, 5, v1
    v_and_b32 v11, 31, v1
    v_lshlrev_b32 v36, 12, v10
    v_lshl_add_u32 v36, v11, 4, v36
    s_mul_i32 s{sT0}, s{sHW}, {OB_P}
    v_lshlrev_b32 v37, 3, v11
    v_add_u32 v37, s{sT0}, v37
    v_mul_u32_u24 v38, {OB_P}, v9
    v_lshl_add_u32 v38, v5, 3, v38
    v_add_u32 v38, {L_OB}, v38
    s_lshl_b32 s{sT0}, s{sXC}, 9
    v_lshl_add_u32 v39, v11, 4, s{sT0}
    v_lshlrev_b32 v35, 4, v6               ; v35: c*16
    s_lshl_b32 s{sKOFF}, s{sXC}, 9
    s_lshl_b32 s{sT0}, s{sHL}, 15
    s_add_u32 s{sKOFF}, s{sKOFF}, s{sT0}
    s_lshl_b32 s{sT0}, s{sHW}, 13
    s_add_u32 s{sKOFF}, s{sKOFF}, s{sT0}
    s_add_u32 s{sKOFF}, s{sKOFF}, {W_OT}
    s_lshl_b32 s{sVOFF}, s{sH}, 13
    s_and_b32 s{sT0}, s{sR}, 7
    s_lshl_b32 s{sT0}, s{sT0}, 10
    s_add_u32 s{sVOFF}, s{sVOFF}, s{sT0}
    s_lshl_b32 s{sT0}, s{sHW}, 8
    s_add_u32 s{sVOFF}, s{sVOFF}, s{sT0}
    s_add_u32 s{sVOFF}, s{sVOFF}, {W_Y}
    """)
    if warm:
        A(f"""
        s_getpc_b64 s[{sT2}:{sT3}]
        s_min_u32 s{sT0}, s{sHW}, 2
        s_lshl_b32 s{sT0}, s{sT0}, 10
        v_add_u32 v8, s{sT0}, v2
        global_load_dwordx4 v[12:15], v8, s[{sT2}:{sT3}]
        s_waitcnt vmcnt(0)
        """)
    A(f"""
    s_waitcnt lgkmcnt(0)
    s_barrier
    """)
    stamp()
    stamp(3)
    A(f"""
    s_cmp_lg_u32 s{sHW}, 0
    s_cbranch_scc1 L_nopub
    ds_read_b128 v[8:11], v39 offset:{L_ACC}
    s_mov_b32 exec_hi, 0
    s_lshl_b32 s{sT0}, s2, 9
    s_add_u32 s{sT0}, s{sT0}, {W_OT}
    s_waitcnt lgkmcnt(0)
    """)
    pub_store([f"buffer_store_dwordx4 v[8:11], v2, s[{SRD_WS}:{SRD_WS + 3}], s{sT0} offen"], sLOCH)
    A(f"""
    s_mov_b64 exec, -1
    L_nopub:
    """)
    poll([f"buffer_load_dwordx4 v[16:19], v36, s[{SRD_WS}:{SRD_WS + 3}], s{sKOFF} offen sc1"], [16, 17, 18, 19], "o")
    for j in range(4):
        A(f"v_mov_b32 v{20 + j}, v{16 + j}")
    for j in range(4):
        A(f"v_permlane32_swap_b32 v{16 + j}, v{20 + j}")
    for j in range(4):
        A(f"v_add_f32 v{16 + j}, v{16 + j}, v{20 + j}")
    A(f"""
    v_cvt_pk_bf16_f32 v16, v16, v17
    v_cvt_pk_bf16_f32 v17, v18, v19
    ds_write_b64 v37, v[16:17] offset:{L_OB}
    s_waitcnt lgkmcnt(0)
    s_barrier
    """)
    stamp()
    for s_ in range(4):
        A(f"ds_read2_b64 v[{16 + 4 * s_}:{19 + 4 * s_}], v38 offset0:{8 * s_} offset1:{8 * s_ + 4}")
    for s_ in range(4):
        A(f"s_waitcnt lgkmcnt({0 if stamps else 3 - s_})")
        A(f"v_mfma_f32_16x16x32_bf16 v[8:11], v[{16 + 4 * s_}:{19 + 4 * s_}], v[{WF + 4 * s_}:{WF + 4 * s_ + 3}], {'0' if s_ == 0 else 'v[8:11]'}")
    A(f"""
    s_mov_b64 exec, 0xffff
    buffer_store_dwordx4 v[8:11], v35, s[{SRD_WS}:{SRD_WS + 3}], s{sVOFF} offen sc1
    s_mov_b64 exec, -1
    """)
    stamp()
    stamp(3)
    A(f"""
    s_cmp_lg_u32 s{sXC}, 0
    s_cbranch_scc1 L_fin
    """)
    A(f"""
    s_lshl_b32 s{sT0}, s{sHW}, 16
    s_lshl_b32 s{sT1}, s{sR}, 8
    s_add_u32 s{sT0}, s{sT0}, s{sT1}
    s_add_u32 s{sT0}, s{sT0}, {W_Y}
    s_add_u32 s{sT1}, s{sT0}, 32768
    v_lshlrev_b32 v12, 13, v5
    v_lshl_add_u32 v12, v6, 4, v12
    """)
    poll([f"buffer_load_dwordx4 v[16:19], v12, s[{SRD_WS}:{SRD_WS + 3}], s{sT0} offen sc1",
          f"buffer_load_dwordx4 v[20:23], v12, s[{SRD_WS}:{SRD_WS + 3}], s{sT1} offen sc1"], list(range(16, 24)), "y")
    stamp()
    stamp(3)
    A(f"""
    v_add_f32 v16, v16, v20
    v_add_f32 v17, v17, v21
    v_add_f32 v18, v18, v22
    v_add_f32 v19, v19, v23
    v_permlane16_swap_b32 v16, v17
    v_permlane16_swap_b32 v18, v19
    v_add_f32 v16, v16, v17
    v_add_f32 v18, v18, v19
    v_permlane32_swap_b32 v16, v18
    v_add_f32 v16, v16, v18
    s_lshl_b32 s{sT0}, s{sHW}, 8
    v_lshlrev_b32 v12, 2, v1
    v_add_u32 v13, s{sT0}, v12
    ds_write_b32 v13, v16 offset:{L_RED}
    s_waitcnt lgkmcnt(0)
    s_barrier
    s_cmp_lg_u32 s{sHW}, 0
    s_cbranch_scc1 L_not2
    ds_read_b32 v16, v12 offset:{L_RED}
    ds_read_b32 v17, v12 offset:{L_RED + 256}
    ds_read_b32 v18, v12 offset:{L_RED + 512}
    ds_read_b32 v19, v12 offset:{L_RED + 768}
    v_lshlrev_b32 v24, 16, v{XR}
    v_lshlrev_b32 v12, 10, v5
    v_lshl_add_u32 v12, v6, 1, v12         ; b*1024 + c*2
    s_lshl_b32 s{sT0}, s{sR}, 5
    s_add_u32 s{sT0}, s{sT0}, {W_H}
    s_waitcnt lgkmcnt(0)
    v_add_f32 v16, v16, v17
    v_add_f32 v18, v18, v19
    v_add_f32 v16, v16, v18
    v_cvt_pk_bf16_f32 v16, v16, v16
    v_lshlrev_b32 v16, 16, v16
    v_add_f32 v16, v16, v24
    v_mov_b32_dpp v17, v16 quad_perm:[1,0,3,2] row_mask:0xf bank_mask:0xf
    v_cvt_pk_bf16_f32 v16, v16, v17
    v_lshlrev_b32 v{HK}, 16, v16
    s_mov_b32 exec_lo, 0x55555555
    s_mov_b32 exec_hi, 0x55555555
    """)
    pub_store([f"buffer_store_dword v16, v12, s[{SRD_WS}:{SRD_WS + 3}], s{sT0} offen"])
    A(f"""
    s_mov_b64 exec, -1
    L_not2:
    s_lshl_b32 s{sT0}, s{sHW}, 10
    s_add_u32 s{sT0}, s{sT0}, {W_H}
    v_mov_b32 v12, v2
    s_cmp_ge_u32 s{sR}, 28
    s_cbranch_scc1 L_t4
    """)
    poll([f"buffer_load_dwordx4 v[8:11], v12, s[{SRD_WS}:{SRD_WS + 3}], s{sT0} offen sc1"], [8, 9, 10, 11], "h")
    stamp()
    stamp(3)
    layernorm(8, 16, 24)
    stamp(3)
    A(f"""
    s_mul_i32 s{sT0}, s{sHW}, {HN_P}
    v_add_u32 v12, s{sT0}, v2
    ds_write_b128 v12, v[8:11] offset:{L_HN}
    v_and_b32 v13, 3, v6
    v_mul_u32_u24 v57, {HHL_P}, v13
    v_lshl_add_u32 v57, v5, 3, v57
    v_add_u32 v57, {L_HHL}, v57
    v_mul_u32_u24 v13, {HN_P}, v13
    v_lshl_add_u32 v13, v5, 3, v13
    s_lshl_b32 s{sT0}, s{sHW}, 8
    s_add_u32 s{sT0}, s{sT0}, {L_HN}
    v_add_u32 v56, s{sT0}, v13
    s_waitcnt lgkmcnt(0)
    s_barrier
    """)
    stamp(3)
    AF, AC = 8, 24
    for s4 in range(4):
        A(f"ds_read2_b64 v[{AF + 4 * s4}:{AF + 4 * s4 + 3}], v56 offset0:{8 * s4} offset1:{8 * s4 + 4}")
    for s4 in range(4):
        A(f"s_waitcnt lgkmcnt(0)" if stamps == 3 else f"s_waitcnt lgkmcnt({3 - s4})")
        for m in range(2):
            for nt in range(4):
                d = AC + 16 * m + 4 * nt
                f = F1 + 16 * (4 * m + s4) + 4 * nt
                A(f"v_mfma_f32_16x16x32_bf16 v[{d}:{d + 3}], v[{AF + 4 * s4}:{AF + 4 * s4 + 3}], v[{f}:{f + 3}], {'0' if s4 == 0 else f'v[{d}:{d + 3}]'}")
    A(f"""
    s_lshl_b32 s{sT0}, s{sHW}, 11
    v_lshlrev_b32 v12, 4, v6
    v_add_u32 v12, s{sT0}, v12
    s_mov_b64 exec, 0xffff
    """)
    stamp(3)
    for T_ in range(8):
        A(f"ds_write_b128 v12, v[{AC + 4 * T_}:{AC + 4 * T_ + 3}] offset:{L_RED1 + 256 * T_}")
    A(f"""
    s_mov_b64 exec, -1
    s_lshl_b32 s{sT0}, s{sHW}, 2
    v_add_u32 v12, s{sT0}, v2              ; f*16 + b*4
    s_mul_i32 s{sT1}, s{sHW}, {HHL_P}
    v_lshlrev_b32 v13, 1, v1
    v_add_u32 v13, s{sT1}, v13
    s_waitcnt lgkmcnt(0)
    s_barrier
    """)
    stamp(3)
    for w in range(4):
        A(f"ds_read_b32 v{16 + w}, v12 offset:{L_RED1 + 2048 * w}")
        A(f"ds_read_b32 v{20 + w}, v12 offset:{L_RED1 + 2048 * w + 1024}")
    A(f"""
    s_waitcnt lgkmcnt(0)
    v_add_f32 v16, v16, v17
    v_add_f32 v18, v18, v19
    v_add_f32 v20, v20, v21
    v_add_f32 v22, v22, v23
    v_add_f32 v16, v16, v18
    v_add_f32 v20, v20, v22
    v_cvt_pk_bf16_f32 v16, v16, v20
    v_lshlrev_b32 v17, 16, v16             ; g
    v_and_b32 v18, s{sMASK}, v16           ; u
    v_mul_f32 v17, 0xbfb8aa3b, v17
    v_exp_f32 v17, v17
    v_add_f32 v17, 1.0, v17
    v_rcp_f32 v19, v17
    v_fma_f32 v17, -v17, v19, 1.0
    v_fma_f32 v17, v17, v19, v19
    v_cvt_pk_bf16_f32 v17, v17, v17
    v_lshlrev_b32 v17, 16, v17
    v_mul_f32 v17, v17, v18
    v_cvt_pk_bf16_f32 v17, v17, v17
    ds_write_b16 v13, v17 offset:{L_HHL}
    s_waitcnt lgkmcnt(0)
    s_barrier
    ds_read2_b64 v[8:11], v57 offset0:0 offset1:4
    ds_read2_b64 v[12:15], v57 offset0:8 offset1:12
    """)
    stamp(3)
    for ks in range(2):
        A(f"s_waitcnt lgkmcnt(0)" if stamps == 3 else f"s_waitcnt lgkmcnt({1 - ks})")
        for nt in range(8):
            d = AC + 4 * nt
            f = F2 + 32 * ks + 4 * nt
            A(f"v_mfma_f32_16x16x32_bf16 v[{d}:{d + 3}], v[{8 + 4 * ks}:{11 + 4 * ks}], v[{f}:{f + 3}], {'0' if ks == 0 else f'v[{d}:{d + 3}]'}")
    A(f"""
    s_lshl_b32 s{sT0}, s{sR}, 13
    s_lshl_b32 s{sT1}, s{sHW}, 11
    s_add_u32 s{sT0}, s{sT0}, s{sT1}
    s_add_u32 s{sT0}, s{sT0}, {W_PO}
    v_lshlrev_b32 v12, 4, v6
    s_mov_b64 exec, 0xffff
    """)
    pub_store([f"buffer_store_dwordx4 v[{AC + 4 * nt}:{AC + 4 * nt + 3}], v12, s[{SRD_WS}:{SRD_WS + 3}], s{sT0} offen offset:{256 * nt}" for nt in range(8)])
    A("s_mov_b64 exec, -1")
    A.label("L_t4")
    stamp()
    stamp(3)
    A(f"""
    s_lshl_b32 s{sT0}, s{sHW}, 16
    s_lshl_b32 s{sT1}, s{sR}, 8
    s_add_u32 s{sT0}, s{sT0}, s{sT1}
    s_add_u32 s{sT0}, s{sT0}, {W_PO}
    s_add_u32 s{sT1}, s{sT0}, 32768
    s_cmp_eq_u32 s{sHW}, 3
    s_cselect_b32 s{sT1}, s{sT0}, s{sT1}
    s_cselect_b32 s{sCNT}, 0, 1.0
    v_lshlrev_b32 v12, 13, v5
    v_lshl_add_u32 v12, v6, 4, v12
    """)
    poll([f"buffer_load_dwordx4 v[16:19], v12, s[{SRD_WS}:{SRD_WS + 3}], s{sT0} offen sc1",
          f"buffer_load_dwordx4 v[20:23], v12, s[{SRD_WS}:{SRD_WS + 3}], s{sT1} offen sc1"], list(range(16, 24)), "po")
    stamp()
    A(f"""
    v_fma_f32 v16, v20, s{sCNT}, v16
    v_fma_f32 v17, v21, s{sCNT}, v17
    v_fma_f32 v18, v22, s{sCNT}, v18
    v_fma_f32 v19, v23, s{sCNT}, v19
    v_permlane16_swap_b32 v16, v17
    v_permlane16_swap_b32 v18, v19
    v_add_f32 v16, v16, v17
    v_add_f32 v18, v18, v19
    v_permlane32_swap_b32 v16, v18
    v_add_f32 v16, v16, v18
    s_lshl_b32 s{sT0}, s{sHW}, 8
    v_lshlrev_b32 v12, 2, v1
    v_add_u32 v13, s{sT0}, v12
    ds_write_b32 v13, v16 offset:{L_RED + 1024}
    v_lshlrev_b32 v13, 10, v5
    v_lshl_add_u32 v13, v6, 1, v13
    s_lshl_b32 s{sT0}, s{sR}, 5
    v_add_u32 v13, s{sT0}, v13             ; b*1024 + (16t+n)*2
    s_waitcnt lgkmcnt(0)
    s_barrier
    s_cmp_lg_u32 s{sHW}, 0
    s_cbranch_scc1 L_fin
    ds_read_b32 v16, v12 offset:{L_RED + 1024}
    ds_read_b32 v17, v12 offset:{L_RED + 1024 + 256}
    ds_read_b32 v18, v12 offset:{L_RED + 1024 + 512}
    ds_read_b32 v19, v12 offset:{L_RED + 1024 + 768}
    s_waitcnt lgkmcnt(0)
    v_add_f32 v16, v16, v17
    v_add_f32 v18, v18, v19
    v_add_f32 v16, v16, v18
    v_cvt_pk_bf16_f32 v16, v16, v16
    v_lshlrev_b32 v16, 16, v16
    v_add_f32 v16, v16, v{HK}
    v_cvt_pk_bf16_f32 v16, v16, v16
    global_store_short v13, v16, s[{sOUT}:{sOUT + 1}]
    L_fin:
    """)
    if stamps:
        stamp(0)
        A(f"""
        s_cmp_lg_u32 s{sHW}, 0
        s_cbranch_scc1 L_end
        s_waitcnt lgkmcnt(0)
        s_lshl_b32 s{sT0}, s2, 7
        s_add_u32 s{sT0}, s{sT0}, {STAMP_OFF}
        v_mov_b32 v12, s{sT0}
        s_mov_b64 exec, 1
        """)
        A(f"s_getreg_b32 s{sT1}, hwreg(HW_REG_XCC_ID)")
        A(f"v_mov_b32 v8, s{sT1}")
        A(f"global_store_dword v12, v8, s[{sWS}:{sWS + 1}] offset:120")
        A("s_nop 1")
        for i in range(nst[0]):
            A(f"v_mov_b32 v8, s{sST + 2 * i}")
            A(f"v_mov_b32 v9, s{sST + 2 * i + 1}")
            A(f"global_store_dwordx2 v12, v[8:9], s[{sWS}:{sWS + 1}] offset:{8 * i}")
            A("s_nop 1")
    A.label("L_end")
    body, npad = A.render()
    txt = HEAD + f"""; Override launch geometry by editing the next line (default: block=256,
; grid=ceil(out_elems/256), lds=0). Harness parses it; keep it on one line.
; @launch grid=(256,1,1) block=(512,1,1) lds={LDS_BYTES}
.amdgcn_target "amdgcn-amd-amdhsa--gfx950"
.text
.globl {KN}
.p2align 8
.type {KN},@function
{KN}:
{body}
    s_endpgm
.section .rodata,"a"
.p2align 6
.amdhsa_kernel {KN}
  .amdhsa_next_free_vgpr 256
  .amdhsa_next_free_sgpr 102
  .amdhsa_accum_offset 256
  .amdhsa_group_segment_fixed_size 0
  .amdhsa_kernarg_size 96
  .amdhsa_float_denorm_mode_32 3
  .amdhsa_user_sgpr_count 2
  .amdhsa_user_sgpr_kernarg_segment_ptr 1
  .amdhsa_system_sgpr_workgroup_id_x 1
.end_amdhsa_kernel
"""
    return txt, npad, nst[0]


if __name__ == "__main__":
    out = sys.argv[1]
    kv = dict(x.split("=") for x in sys.argv[2:])
    txt, npad, ns = gen(DIST=int(kv.get("dist", 2)), stamps=int(kv.get("stamps", 0)), local=bool(int(kv.get("local", 0))), wnt=kv.get("wnt", "nt"), qnt=kv.get("qnt", ""), fill=int(kv.get("fill", 0)), prio=int(kv.get("prio", 0)), deep=int(kv.get("deep", 0)), prog=int(kv.get("prog", 0)), LEAD=int(kv.get("lead", 8)), b0=int(kv.get("b0", 0)), skip=kv.get("skip", ""), rowt=float(kv.get("rowt", 109.0)), GMAX=int(kv.get("gmax", 8)), asleep=int(kv.get("asleep", 0)), qto=int(kv.get("qto", 1200)), psl=int(kv.get("psl", 8)), tsl=int(kv.get("tsl", 8)), isl=int(kv.get("isl", 8)), apre=int(kv.get("apre", 0)), drow=int(kv.get("drow", 0)), warm=int(kv.get("warm", 0)), PST=int(kv.get("pst", 24)))
    open(out, "w").write(txt)
    print(out, "pads", npad, "stamps", ns, "bytes", len(txt), "lds", LDS_BYTES)
```

```python
import sys
from asmlib import Asm

KN = "sequential_preLN__mha_block_cached__glu_gated_glu__decode_kernel"
HEAD = open("sequential_preLN__mha_block_cached__glu_gated_glu__decode.s.ref").read().split("; Override launch")[0]

L_SC = 0
L_XN = 16384
L_QP = L_XN + 2048
L_ACC = L_QP + 2048
L_MISC = L_ACC + 4096
L_RED = L_MISC + 256
L_OB = L_RED + 2048
OB_P = 272
L_HN = L_OB + 1280
HN_P = 1088
L_HR = L_HN + 4 * HN_P
L_WO = L_HR + 4096
WO_P = 160
L_STG = L_WO + 128 * WO_P
STG_SZ = 9216
L_RED1 = L_SC
L_HHL = L_SC + 8192
HHL_P = 144
L_TAB = L_STG + 4 * STG_SZ
L_EXT = L_TAB + 1024
L_END = L_EXT + 4096
LDS_BYTES = (L_END + 255) // 256 * 256

W_ML = 0x000000
W_CNT = 0x010000
W_XID = 0x020000
W_Y = 0x030000
W_H = 0x070000
W_HH = 0x072000
W_O = 0x080000
W_PO = 0x180000
W_P = 0x200000
W_QP = 0x340000
W_OT = 0x300000
W_TM = 0x028000
WS_SIZE = 0x800000
STAMP_OFF = 512 << 20

SCALE = 0x3DB504F3
LOG2E = 0x3FB8AA3B
EPS = 0x3727C5AC
SPIN = 40000

sX, sK, sV, sWQ, sWO, sWG, sWU, sWD, sOUT, sDBG, sWS = 4, 6, 8, 10, 12, 16, 18, 20, 22, 24, 26
SRD_K, SRD_V, SRD_WS, SRD_T = 28, 32, 36, 40
sWAVE, sXC, sR, sHL, sH, sB, sHALF, sLIST = 44, 45, 46, 47, 48, 49, 50, 51
sT0, sT1, sT2, sT3 = 52, 53, 54, 55
sKOFF, sVOFF, sCNT = 56, 57, 58
sSCALE, sLOG2E, sMASK, sSELLO, sSELHI = 59, 60, 61, 62, 63
sHW = 64
sSPIN = 65
sTAIL = 66
sEX = 68
sST = 72
sLOCAL = 70
sTS = 98
sLOCH = 3


def gen(DIST=2, stamps=False, local=False, wnt='nt', qnt='', fill=2, prio=0, deep=0, prog=0, LEAD=8, b0=0, skip='', rowt=109.0, GMAX=8, asleep=0, qto=1200, psl=8, tsl=8, isl=8, apre=0, drow=0, warm=0, PST=24):
    import struct
    ROWRATE = struct.unpack('<I', struct.pack('<f', 1.0 / rowt))[0]
    WNT = wnt
    A = Asm()
    nst = [0]

    def stamp(kind=1):
        if stamps and (stamps == kind or kind == 0):
            A(f"s_memrealtime s[{sST + 2 * nst[0]}:{sST + 2 * nst[0] + 1}]")
            nst[0] += 1

    def wave_allreduce(op, v, t):
        for r in (8, 4, 2, 1):
            A(f"{op}_dpp v{v}, v{v}, v{v} row_ror:{r} row_mask:0xf bank_mask:0xf")
        A(f"v_mov_b32 v{t}, v{v}")
        A(f"v_permlane16_swap_b32 v{v}, v{t}")
        A(f"{op} v{v}, v{v}, v{t}")
        A(f"v_mov_b32 v{t}, v{v}")
        A(f"v_permlane32_swap_b32 v{v}, v{t}")
        A(f"{op} v{v}, v{v}, v{t}")

    def reduce8(a):
        for j in (0, 2, 4, 6):
            A(f"v_permlane16_swap_b32 v{a + j}, v{a + j + 1}")
        for j in (0, 2, 4, 6):
            A(f"v_add_f32 v{a + j}, v{a + j}, v{a + j + 1}")
        for j in (0, 4):
            A(f"v_permlane32_swap_b32 v{a + j}, v{a + j + 2}")
        for j in (0, 4):
            A(f"v_add_f32 v{a + j}, v{a + j}, v{a + j + 2}")

    def rbf(v):
        A(f"v_cvt_pk_bf16_f32 v{v}, v{v}, v{v}")
        A(f"v_lshlrev_b32 v{v}, 16, v{v}")

    def layernorm(pk, f, t):
        for j in range(4):
            A(f"v_lshlrev_b32 v{f + 2 * j}, 16, v{pk + j}")
            A(f"v_and_b32 v{f + 2 * j + 1}, s{sMASK}, v{pk + j}")
        A(f"v_add_f32 v{t}, v{f}, v{f + 1}")
        for j in range(2, 8):
            A(f"v_add_f32 v{t}, v{t}, v{f + j}")
        wave_allreduce("v_add_f32", t, t + 1)
        A(f"v_mul_f32 v{t}, 0x3b000000, v{t}")
        A(f"v_sub_f32 v{t + 1}, v{f}, v{t}")
        A(f"v_mul_f32 v{t + 2}, v{t + 1}, v{t + 1}")
        for j in range(1, 8):
            A(f"v_sub_f32 v{t + 1}, v{f + j}, v{t}")
            A(f"v_fmac_f32 v{t + 2}, v{t + 1}, v{t + 1}")
        wave_allreduce("v_add_f32", t + 2, t + 1)
        A(f"v_mul_f32 v{t + 2}, 0x3b000000, v{t + 2}")
        rbf(t)
        rbf(t + 2)
        A(f"v_add_f32 v{t + 2}, 0x{EPS:08x}, v{t + 2}")
        rbf(t + 2)
        A(f"v_sqrt_f32 v{t + 2}, v{t + 2}")
        rbf(t + 2)
        A(f"v_rcp_f32 v{t + 3}, v{t + 2}")
        for j in range(0, 8, 2):
            A(f"v_sub_f32 v{f + j}, v{f + j}, v{t}")
            A(f"v_sub_f32 v{f + j + 1}, v{f + j + 1}, v{t}")
            A(f"v_cvt_pk_bf16_f32 v{t + 1}, v{f + j}, v{f + j + 1}")
            A(f"v_lshlrev_b32 v{f + j}, 16, v{t + 1}")
            A(f"v_and_b32 v{f + j + 1}, s{sMASK}, v{t + 1}")
        for j in range(8):
            A(f"v_mul_f32 v{t + 4}, v{f + j}, v{t + 3}")
            A(f"v_fma_f32 v{t + 5}, -v{t + 4}, v{t + 2}, v{f + j}")
            A(f"v_fma_f32 v{f + j}, v{t + 5}, v{t + 3}, v{t + 4}")
        for j in range(0, 8, 2):
            A(f"v_cvt_pk_bf16_f32 v{pk + j // 2}, v{f + j}, v{f + j + 1}")
        for j in range(4):
            A(f"v_lshlrev_b32 v{f + 2 * j}, 16, v{pk + j}")
            A(f"v_and_b32 v{f + 2 * j + 1}, s{sMASK}, v{pk + j}")

    lab = [0]

    def poll(loads, regs, name, sleep=0):
        lab[0] += 1
        L = f"L_poll{lab[0]}_{name}"
        A(f"s_mov_b32 s{sSPIN}, 0")
        A.label(L)
        if sleep:
            A(f"s_sleep {sleep}")
        for l in loads:
            A(l)
        A("s_waitcnt vmcnt(0)")
        A(f"v_cmp_eq_u32 vcc, -1, v{regs[0]}")
        for r in regs[1:]:
            A(f"v_cmp_eq_u32 s[{sT2}:{sT3}], -1, v{r}")
            A(f"s_or_b64 vcc, vcc, s[{sT2}:{sT3}]")
        A(f"s_add_u32 s{sSPIN}, s{sSPIN}, 1")
        A(f"s_cmp_gt_u32 s{sSPIN}, {SPIN}")
        A(f"s_cbranch_scc1 {L}_x")
        A("s_cmp_lg_u64 vcc, 0")
        A(f"s_cbranch_scc1 {L}")
        A.label(L + "_x")

    def pub_store(ins, flag=None):
        flag = sLOCAL if flag is None else flag
        if local:
            lab[0] += 1
            A(f"""
            s_cmp_eq_u32 s{flag}, 1
            s_cbranch_scc1 L_ls{lab[0]}
            {chr(10).join(i + ' sc1' for i in ins)}
            s_branch L_le{lab[0]}
            L_ls{lab[0]}:
            s_nop 3
            {chr(10).join(ins)}
            L_le{lab[0]}:
            """)
        else:
            for i in ins:
                A(i + " sc1")

    if stamps == 2:
        stamp(2)
    A(f"""
    s_cmp_ge_u32 s2, 256
    s_cbranch_scc1 L_end
    s_load_dwordx16 s[4:19], s[0:1], 0
    s_load_dwordx8 s[20:27], s[0:1], 64
    v_lshrrev_b32 v3, 6, v0
    v_and_b32 v1, 63, v0
    v_readfirstlane_b32 s{sWAVE}, v3
    v_lshlrev_b32 v2, 4, v1
    s_and_b32 s{sXC}, s2, 7
    s_lshr_b32 s{sR}, s2, 3
    s_lshr_b32 s{sHL}, s{sR}, 3
    s_lshl_b32 s{sH}, s{sHL}, 3
    s_add_u32 s{sH}, s{sH}, s{sXC}
    s_bfe_u32 s{sB}, s{sR}, 0x20001
    s_and_b32 s{sHALF}, s{sR}, 1
    s_lshl_b32 s{sLIST}, s{sB}, 5
    s_add_u32 s{sLIST}, s{sLIST}, s{sH}
    s_lshl_b32 s{sLIST}, s{sLIST}, 1
    s_add_u32 s{sLIST}, s{sLIST}, s{sHALF}
    s_lshl_b32 s{sT0}, s{sLIST}, 20
    s_mov_b32 s{sSCALE}, 0x{SCALE:08x}
    s_mov_b32 s{sLOG2E}, 0x{LOG2E:08x}
    s_mov_b32 s{sMASK}, 0xffff0000
    s_mov_b32 s{sSELLO}, 0x05040100
    s_mov_b32 s{sSELHI}, 0x07060302
    s_mov_b32 s{SRD_K + 2}, 0x100000
    s_mov_b32 s{SRD_K + 3}, 0x20000
    s_mov_b32 s{SRD_V + 2}, 0xf00000
    s_mov_b32 s{SRD_V + 3}, 0x20000
    s_mov_b32 s{SRD_WS + 2}, 0x{WS_SIZE:x}
    s_mov_b32 s{SRD_WS + 3}, 0x20000
    s_mov_b32 s{SRD_T + 3}, 0x20000
    v_bfe_u32 v5, v0, 4, 2          ; g
    v_and_b32 v6, 15, v0            ; c
    """)
    if stamps:
        for i in range(nst[0] + 1, 14):
            A(f"s_mov_b64 s[{sST + 2 * i}:{sST + 2 * i + 1}], 0")
    stamp(0)
    A(f"""
    s_waitcnt lgkmcnt(0)
    s_add_u32 s{SRD_K}, s{sK}, s{sT0}
    s_addc_u32 s{SRD_K + 1}, s{sK + 1}, 0
    s_lshl_b32 s{sT1}, s{sXC}, 21
    s_sub_u32 s{sT0}, s{sT0}, s{sT1}
    s_add_u32 s{SRD_V}, s{sV}, s{sT0}
    s_addc_u32 s{SRD_V + 1}, s{sV + 1}, 0
    s_mov_b32 s{SRD_WS}, s{sWS}
    s_mov_b32 s{SRD_WS + 1}, s{sWS + 1}
    s_cmp_ge_u32 s{sWAVE}, 4
    s_cbranch_scc1 L_helper
    """)

    RING = 128
    Q = 8
    T = 12
    CA, CB = 16, 17
    TM = 18
    MX = 24
    ACC = 32
    PB = (40, 48)
    PLO = 56
    NH = 64
    issued = []
    nxt = [0]

    def slot(j):
        if deep and 8 <= j < 12:
            return 64 + 16 * (j - 8)
        if deep and 12 <= j < 16:
            return RING + 16 * (j - 12)
        return RING + 16 * (j % 8)

    landed = [0]

    def issue1():
        i = nxt[0]
        if i >= 8 * NH:
            return
        j, k = i // 4, i % 4
        srd, so = (SRD_K, sKOFF) if j < NH else (SRD_V, sVOFF)
        r = slot(j)
        A(f"buffer_load_dwordx4 v[{r + 4 * k}:{r + 4 * k + 3}], v2, s[{srd}:{srd + 3}], s{so} offen offset:{1024 * k} nt")
        if k == 3:
            A(f"s_add_u32 s{so}, s{so}, {4096 if j % 2 == 0 else 32768 - 4096}")
        nxt[0] += 1

    def issue_upto(last):
        while nxt[0] <= min(last, 8 * NH - 1):
            issue1()

    def wait_half(j):
        need = 4 * j + 4
        assert nxt[0] >= need
        A(f"s_waitcnt vmcnt({nxt[0] - need})")

    def pstamp():
        if prog:
            A(f"""
            s_memrealtime s[98:99]
            s_waitcnt lgkmcnt(0)
            s_mov_b32 m0, s100
            s_nop 0
            v_writelane_b32 v30, s98, m0
            s_add_u32 s100, s100, 1
            """)

    def kcompute(j):
        if j % 4 == 0:
            pstamp()
        r = slot(j)
        for q in range(4):
            for i in range(4):
                if q == 0:
                    A(f"v_dot2_f32_bf16 v{T + i}, v{r + 4 * i}, v{Q}, 0")
                else:
                    A(f"v_dot2_f32_bf16 v{T + i}, v{r + 4 * i + q}, v{Q + q}, v{T + i}")
        for ro in (8, 4, 2):
            for i in range(4):
                A(f"v_add_f32_dpp v{T + i}, v{T + i}, v{T + i} row_ror:{ro} row_mask:0xf bank_mask:0xf")
        C = CA if j % 2 == 0 else CB
        for i in range(4):
            A(f"v_add_f32_dpp v{C}, v{T + i}, v{T + i} row_ror:1 row_mask:0xf bank_mask:0x{1 << i:x}")
        if j % 2 == 1:
            off = ((j % 8) // 2) * 512
            A(f"""
            v_cvt_pk_bf16_f32 v{TM}, v{CA}, v{CB}
            v_lshlrev_b32 v{TM + 1}, 16, v{TM}
            v_and_b32 v{TM + 2}, s{sMASK}, v{TM}
            v_mul_f32 v{TM + 1}, s{sSCALE}, v{TM + 1}
            v_mul_f32 v{TM + 2}, s{sSCALE}, v{TM + 2}
            v_cvt_pk_bf16_f32 v{TM}, v{TM + 1}, v{TM + 2}
            v_lshlrev_b32 v{TM + 1}, 16, v{TM}
            v_and_b32 v{TM + 2}, s{sMASK}, v{TM}
            ds_write_b32 v4, v{TM + 1} offset:{off}
            ds_write_b32 v4, v{TM + 2} offset:{off + 16}
            v_max3_f32 v{MX}, v{MX}, v{TM + 1}, v{TM + 2}
            """)
            if j % 8 == 7:
                A("v_add_u32 v4, 2048, v4")

    def pread(chunk):
        pb = PB[chunk % 2]
        off = (chunk % 4) * 512
        A(f"ds_read_b128 v[{pb}:{pb + 3}], v3 offset:{off}")
        A(f"ds_read_b128 v[{pb + 4}:{pb + 7}], v3 offset:{off + 16}")

    def vcompute(j):
        if j % 4 == 0:
            pstamp()
        r = RING + 16 * (j % 8)
        pb = PB[(j // 2) % 2] + 4 * (j % 2)
        for i in range(4):
            A(f"v_lshrrev_b32 v{PLO + (i & 1)}, 16, v{pb + i}")
            for q in range(4):
                A(f"v_dot2c_f32_bf16 v{ACC + 2 * q + 1}, v{r + 4 * i + q}, v{pb + i}")
            for q in range(4):
                A(f"v_dot2c_f32_bf16 v{ACC + 2 * q}, v{r + 4 * i + q}, v{PLO + (i & 1)}")

    A("s_mov_b32 s100, 0")
    A("v_mov_b32 v30, 0")
    A(f"s_lshl_b32 s{sKOFF}, s{sWAVE}, 13")
    A(f"s_add_u32 s{sVOFF}, s{sKOFF}, s{sT1}")
    issue_upto(7)
    A("s_barrier")
    for n in range(8, 48 if deep else 32):
        if fill:
            if n % 2 == 0:
                A(f"s_waitcnt vmcnt({fill - 2})")
        issue1()
    A(f"""
    s_lshl_b32 s{sT0}, s{sWAVE}, 7
    v_lshlrev_b32 v3, 5, v5
    v_add_u32 v3, s{sT0}, v3
    v_lshrrev_b32 v4, 2, v6
    v_lshlrev_b32 v4, 2, v4
    v_add_u32 v4, v3, v4
    v_lshlrev_b32 v7, 5, v6             ; c*32
    v_mov_b32 v{MX}, 0xff800000
    """)
    A("s_barrier")
    QT = 32
    for w in range(4):
        A(f"ds_read_b128 v[{QT + 8 * w}:{QT + 3 + 8 * w}], v7 offset:{L_QP + 512 * w}")
        A(f"ds_read_b128 v[{QT + 4 + 8 * w}:{QT + 7 + 8 * w}], v7 offset:{L_QP + 512 * w + 16}")
    A("s_waitcnt lgkmcnt(0)")
    for j in range(8):
        A(f"v_add_f32 v{QT + j}, v{QT + j}, v{QT + 8 + j}")
        A(f"v_add_f32 v{QT + 16 + j}, v{QT + 16 + j}, v{QT + 24 + j}")
    for j in range(8):
        A(f"v_add_f32 v{QT + j}, v{QT + j}, v{QT + 16 + j}")
    for j in range(4):
        A(f"v_cvt_pk_bf16_f32 v{Q + j}, v{QT + 2 * j}, v{QT + 1 + 2 * j}")
    for j in range(8):
        A(f"v_mov_b32 v{ACC + j}, 0")

    def kstep(j, lead):
        wait_half(j)
        issue_upto(min(4 * j + 3 + lead, 4 * j + 31))
        kcompute(j)

    first = 16 if deep else 8
    for j in range(first):
        if deep and j < 13:
            wait_half(j)
            kcompute(j)
            if j < 4:
                issue_upto(4 * (12 + j) + 3)
        elif deep:
            kstep(j, min(LEAD, 12))
        else:
            kstep(j, LEAD)
    A(f"s_mov_b32 s{sCNT}, {5 if deep else 6}")
    A.label("L_kloop")
    d0 = nxt[0] - 4 * first
    for j in range(first, first + 8):
        kstep(j, LEAD)
    assert nxt[0] - 4 * first - 32 == d0
    A(f"s_sub_u32 s{sCNT}, s{sCNT}, 1")
    A(f"s_cmp_lg_u32 s{sCNT}, 0")
    A("s_cbranch_scc1 L_kloop")
    nxt[0] += 4 * (56 - first - 8)
    for j in range(56, 64):
        kstep(j, LEAD + 8 * (j - 55))
    issue_upto(4 * 72 - 1)
    for ro in (4, 8):
        A(f"v_max_f32_dpp v{MX}, v{MX}, v{MX} row_ror:{ro} row_mask:0xf bank_mask:0xf")
    A(f"""
    v_mov_b32 v{TM}, v{MX}
    v_permlane16_swap_b32 v{MX}, v{TM}
    v_max_f32 v{MX}, v{MX}, v{TM}
    v_mov_b32 v{TM}, v{MX}
    v_permlane32_swap_b32 v{MX}, v{TM}
    v_max_f32 v{MX}, v{MX}, v{TM}
    s_lshl_b32 s{sT0}, s{sWAVE}, 2
    v_mov_b32 v{TM}, s{sT0}
    ds_write_b32 v{TM}, v{MX} offset:{L_MISC}
    s_waitcnt lgkmcnt(0)
    """)

    def midphase_common(E, TT):
        A("s_barrier")
        A(f"""
        v_lshlrev_b32 v{TT}, 5, v0
        v_mov_b32 v{TT + 1}, 0
        ds_read_b128 v[{E}:{E + 3}], v{TT} offset:{L_SC}
        ds_read_b128 v[{E + 4}:{E + 7}], v{TT} offset:{L_SC + 16}
        ds_read_b128 v[{TT + 4}:{TT + 7}], v{TT + 1} offset:{L_MISC}
        s_waitcnt lgkmcnt(0)
        v_max_f32 v{TT + 4}, v{TT + 4}, v{TT + 5}
        v_max3_f32 v{TT + 4}, v{TT + 4}, v{TT + 6}, v{TT + 7}     ; m_loc
        """)
        for j in range(8):
            A(f"v_sub_f32 v{E + j}, v{E + j}, v{TT + 4}")
        for j in range(8):
            A(f"v_mul_f32 v{E + j}, s{sLOG2E}, v{E + j}")
        for j in range(8):
            A(f"v_exp_f32 v{E + j}, v{E + j}")
        A(f"v_add_f32 v{TT + 2}, v{E}, v{E + 1}")
        for j in range(2, 8):
            A(f"v_add_f32 v{TT + 2}, v{TT + 2}, v{E + j}")
        wave_allreduce("v_add_f32", TT + 2, TT + 3)
        A(f"""
        s_lshl_b32 s{sT0}, s{sWAVE}, 2
        v_mov_b32 v{TT + 3}, s{sT0}
        ds_write_b32 v{TT + 3}, v{TT + 2} offset:{L_MISC + 32}
        s_waitcnt lgkmcnt(0)
        s_barrier
        """)

    def midphase_end(E, TT):
        A("s_barrier")
        A(f"""
        ds_read_b32 v{TT + 2}, v{TT + 1} offset:{L_MISC + 64}
        s_waitcnt lgkmcnt(0)
        """)
        for j in range(8):
            A(f"v_mul_f32 v{E + j}, v{E + j}, v{TT + 2}")
        for j in range(0, 8, 2):
            A(f"v_cvt_pk_bf16_f32 v{TT + 3}, v{E + j}, v{E + j + 1}")
            A(f"v_lshlrev_b32 v{E + j}, 16, v{TT + 3}")
            A(f"v_and_b32 v{E + j + 1}, s{sMASK}, v{TT + 3}")
        A(f"""
        ds_write_b128 v{TT}, v[{E}:{E + 3}] offset:{L_SC}
        ds_write_b128 v{TT}, v[{E + 4}:{E + 7}] offset:{L_SC + 16}
        s_waitcnt lgkmcnt(0)
        s_barrier
        """)

    midphase_common(64, 72)
    midphase_end(64, 72)

    VE, VTA, VPA, VAD, VG = 60, 58, 59, 31, 64
    sNV, sNP, sNX, sLC, sAX, sW13 = 64, 66, 67, 68, 69, 70
    pread(0)
    A(f"""
    v_mov_b32 v{VTA}, {L_TAB}
    v_mov_b32 v{VG}, v3
    v_lshl_add_u32 v{VAD}, v5, 2, v7               ; (8c+g)*4
    s_mov_b32 s{sLC}, s{sXC}
    s_mov_b32 s{sAX}, s{sXC}
    s_lshl_b32 s{sW13}, s{sWAVE}, 13
    """)

    def vstep(jv):
        j = NH + jv
        if jv % 2 == 0:
            A("s_waitcnt lgkmcnt(0)")
        else:
            if jv % 8 == 7:
                A("v_add_u32 v3, 2048, v3")
            pread(jv // 2 + 1)
        wait_half(j)
        issue_upto(4 * j + 3 + 8)
        vcompute(jv)

    def vloads(r):
        for i in range(4):
            A(f"buffer_load_dwordx4 v[{r + 4 * i}:{r + 4 * i + 3}], v2, s[{SRD_V}:{SRD_V + 3}], s{sVOFF} offen offset:{1024 * i} nt")

    def flush():
        reduce8(ACC)
        A(f"""
        s_lshl_b32 s{sT0}, s{sAX}, 9
        v_add_u32 v{TM}, s{sT0}, v{VAD}
        ds_add_f32 v{TM}, v{ACC} offset:{L_ACC}
        ds_add_f32 v{TM}, v{ACC + 4} offset:{L_ACC + 16}
        """)

    def flushz(tag):
        A(f"""
        s_bitcmp1_b32 s{sLC}, 9
        s_cbranch_scc0 L_nodec{tag}
        v_mov_b32 v{TM + 1}, 1
        v_mov_b32 v{TM + 2}, 0
        ds_write_b32 v{TM + 2}, v{TM + 1} offset:{L_MISC + 148}
        s_and_b32 s{sLC}, s{sLC}, 7
        s_branch L_fzx{tag}
        L_nodec{tag}:
        """)
        flush()
        for j in range(8):
            A(f"v_mov_b32 v{ACC + j}, 0")
        A(f"""
        s_bitcmp1_b32 s{sLC}, 8
        s_cbranch_scc0 L_nosig{tag}
        v_mov_b32 v{TM + 1}, 1
        v_mov_b32 v{TM + 2}, 0
        s_mov_b64 exec, 1
        ds_add_u32 v{TM + 2}, v{TM + 1} offset:{L_MISC + 132}
        s_mov_b64 exec, -1
        L_nosig{tag}:
        s_and_b32 s{sLC}, s{sLC}, 7
        s_mov_b32 s{sAX}, s{sLC}
        L_fzx{tag}:
        """)

    for jv in range(8):
        vstep(jv)
    assert nxt[0] == 4 * (NH + 10), nxt
    A(f"ds_read_b128 v[{VE}:{VE + 3}], v{VTA}")
    for k in range(4):
        k1 = (k + 1) % 4
        A(f"""
        L_row{k}:
        s_waitcnt lgkmcnt(0)
        v_readfirstlane_b32 s{sNV}, v{VE}
        v_readfirstlane_b32 s{sNP}, v{VE + 1}
        v_readfirstlane_b32 s{sNX}, v{VE + 2}
        s_cmp_ge_u32 s{sNV}, -2
        s_cbranch_scc1 L_odd{k}
        v_add_u32 v{VTA}, 16, v{VTA}
        s_add_u32 s{sVOFF}, s{sNV}, s{sW13}
        v_add_u32 v{VPA}, s{sNP}, v{VG}
        ds_read_b128 v[{VE}:{VE + 3}], v{VTA}
        s_waitcnt vmcnt(4)
        """)
        vloads(RING + 32 * k1)
        A(f"""
        s_add_u32 s{sVOFF}, s{sVOFF}, 4096
        s_cmp_lg_u32 s{sLC}, s{sAX}
        s_cbranch_scc1 L_flush{k}
        L_fback{k}:
        """)
        vcompute(2 * k)
        pb = PB[(k + 1) % 2]
        A(f"ds_read_b128 v[{pb}:{pb + 3}], v{VPA}")
        A(f"ds_read_b128 v[{pb + 4}:{pb + 7}], v{VPA} offset:16")
        A("s_waitcnt vmcnt(4)")
        vloads(RING + 32 * k1 + 16)
        vcompute(2 * k + 1)
        A(f"s_mov_b32 s{sLC}, s{sNX}")
    A("s_branch L_row0")
    for k in range(4):
        A.label(f"L_flush{k}")
        A("s_nop 4")
        flushz(f"a{k}")
        A(f"s_branch L_fback{k}")
        A(f"""
        L_odd{k}:
        s_cmp_eq_u32 s{sNV}, -1
        s_cbranch_scc1 L_last{k}
        s_mov_b32 s{sSPIN}, 0
        L_pend{k}:
        ds_read_b128 v[{VE}:{VE + 3}], v{VTA}
        s_waitcnt lgkmcnt(0)
        v_readfirstlane_b32 s{sNV}, v{VE}
        s_add_u32 s{sSPIN}, s{sSPIN}, 1
        s_cmp_gt_u32 s{sSPIN}, {SPIN * 40}
        s_cbranch_scc1 L_last{k}
        s_cmp_eq_u32 s{sNV}, -2
        s_cbranch_scc1 L_pend{k}
        s_branch L_row{k}
        L_last{k}:
        s_cmp_eq_u32 s{sLC}, s{sAX}
        s_cbranch_scc1 L_last2{k}
        """)
        flushz(f"b{k}")
        A.label(f"L_last2{k}")
        A("s_waitcnt vmcnt(4)")
        vcompute(2 * k)
        A("s_waitcnt vmcnt(0)")
        vcompute(2 * k + 1)
        A("s_branch L_vdone")
    A.label("L_vdone")
    pstamp()
    if prog:
        A(f"""
        s_lshl_b32 s{sT0}, s2, 10
        s_lshl_b32 s{sT1}, s{sWAVE}, 8
        s_add_u32 s{sT0}, s{sT0}, s{sT1}
        s_add_u32 s{sT0}, s{sT0}, {STAMP_OFF + (1 << 20)}
        v_lshlrev_b32 v29, 2, v1
        v_add_u32 v29, s{sT0}, v29
        global_store_dword v29, v30, s[{sWS}:{sWS + 1}]
        """)
    A("s_nop 4")
    flush()
    A(f"""
    s_waitcnt lgkmcnt(0)
    s_barrier
    s_endpgm
    """)

    A.label("L_helper")
    W = 128
    if prio:
        A("s_setprio 3")
    stamp(2)
    L_XN4, L_QS = L_SC, L_SC + 8192
    C1, C2, DEC = L_MISC + 136, L_MISC + 140, L_MISC + 144

    def lds_spin(off, val, name, vz, vt):
        A(f"""
        s_mov_b32 s{sSPIN}, 0
        L_sp{name}:
        ds_read_b32 v{vt}, v{vz} offset:{off}
        s_waitcnt lgkmcnt(0)
        v_readfirstlane_b32 s{sT0}, v{vt}
        s_add_u32 s{sSPIN}, s{sSPIN}, 1
        s_cmp_gt_u32 s{sSPIN}, {SPIN * 40}
        s_cbranch_scc1 L_sp{name}_x
        s_cmp_lt_u32 s{sT0}, {val}
        s_cbranch_scc1 L_sp{name}
        L_sp{name}_x:
        """)

    A(f"""
    s_memrealtime s[{sTS}:{sTS + 1}]
    s_sub_u32 s{sHW}, s{sWAVE}, 4
    s_lshl_b32 s{sT0}, s{sHW}, 10
    v_add_u32 v7, s{sT0}, v2
    global_load_dwordx4 v[8:11], v7, s[{sX}:{sX + 1}]
    s_lshl_b32 s{sT0}, s{sH}, 8
    s_add_u32 s{SRD_T}, s{sWQ}, s{sT0}
    s_addc_u32 s{SRD_T + 1}, s{sWQ + 1}, 0
    s_sub_u32 s{SRD_T + 2}, 0x400000, s{sT0}
    s_cmp_lg_u32 s{sHALF}, 0
    s_cbranch_scc1 L_nopq
    s_lshl_b32 s{sT1}, s{sB}, 20
    s_lshl_b32 s{sT0}, s{sHW}, 18
    s_add_u32 s{sT1}, s{sT1}, s{sT0}       ; (128b + 32w')*8192
    v_lshlrev_b32 v7, 16, v5               ; 8g*8192
    v_lshl_add_u32 v7, v6, 4, v7
    """)
    for i in range(8):
        A(f"buffer_load_dwordx4 v[{W + 4 * i}:{W + 4 * i + 3}], v7, s[{SRD_T}:{SRD_T + 3}], s{sT1} offen nt")
        A(f"s_add_u32 s{sT1}, s{sT1}, 8192")
    A(f"""
    L_nopq:
    v_mov_b32 v12, 0
    v_mov_b32 v13, 0
    v_mov_b32 v14, 0
    v_mov_b32 v15, 0
    s_lshl_b32 s{sT0}, s{sHW}, 10
    v_add_u32 v16, s{sT0}, v2
    ds_write_b128 v16, v[12:15] offset:{L_ACC}
    ds_write_b128 v12, v[12:15] offset:{L_MISC + 128}
    ds_write_b128 v12, v[12:15] offset:{DEC}
    ds_write_b128 v2, v[12:15] offset:{L_QS}
    ds_write_b128 v2, v[12:15] offset:{L_QS + 1024}
    v_mov_b32 v63, 0
    s_waitcnt lgkmcnt(0)
    s_barrier
    s_cmp_lg_u32 s{sHALF}, 0
    s_cbranch_scc1 L_wx0
    s_waitcnt vmcnt(8)
    s_branch L_wx1
    L_wx0:
    s_waitcnt vmcnt(0)
    L_wx1:
    """)
    stamp(2)
    layernorm(8, 16, 24)
    A(f"""
    v_lshlrev_b32 v7, 5, v1
    s_lshl_b32 s{sT0}, s{sHW}, 11
    v_add_u32 v7, s{sT0}, v7
    ds_write_b128 v7, v[16:19] offset:{L_XN4}
    ds_write_b128 v7, v[20:23] offset:{L_XN4 + 16}
    v_mov_b32 v12, 1
    s_mov_b64 exec, 1
    ds_add_u32 v63, v12 offset:{C1}
    s_mov_b64 exec, -1
    """)
    stamp(2)
    A(f"""
    s_cmp_lg_u32 s{sHALF}, 0
    s_cbranch_scc1 L_pubx
    """)
    lds_spin(C1, 4, "c1a", 63, 12)
    A(f"""
    s_lshl_b32 s{sT0}, s{sB}, 9
    s_lshl_b32 s{sT1}, s{sHW}, 7
    s_add_u32 s{sT0}, s{sT0}, s{sT1}
    v_lshlrev_b32 v7, 5, v5
    v_add_u32 v7, s{sT0}, v7               ; (128b + 32w' + 8g)*4
    """)
    for bp in range(4):
        A(f"ds_read_b128 v[{64 + 8 * bp}:{67 + 8 * bp}], v7 offset:{L_XN4 + 2048 * bp}")
        A(f"ds_read_b128 v[{68 + 8 * bp}:{71 + 8 * bp}], v7 offset:{L_XN4 + 2048 * bp + 16}")
    AQ = 96
    for j in range(32):
        A(f"v_mov_b32 v{AQ + j}, 0")
    A("s_waitcnt lgkmcnt(0)")
    for i in range(8):
        A(f"s_waitcnt vmcnt({7 - i})")
        for bp in range(4):
            x = 64 + 8 * bp + i
            A(f"v_lshrrev_b32 v{30 + (bp & 1)}, 16, v{x}")
            for q in range(4):
                A(f"v_dot2c_f32_bf16 v{AQ + 8 * bp + 2 * q + 1}, v{W + 4 * i + q}, v{x}")
            for q in range(4):
                A(f"v_dot2c_f32_bf16 v{AQ + 8 * bp + 2 * q}, v{W + 4 * i + q}, v{30 + (bp & 1)}")
    stamp(2)
    for bp in range(4):
        reduce8(AQ + 8 * bp)
    A(f"""
    v_lshlrev_b32 v7, 5, v6
    v_lshl_add_u32 v7, v5, 2, v7
    """)
    for bp in range(4):
        A(f"ds_add_f32 v7, v{AQ + 8 * bp} offset:{L_QS + 512 * bp}")
        A(f"ds_add_f32 v7, v{AQ + 8 * bp + 4} offset:{L_QS + 512 * bp + 16}")
    A(f"""
    v_mov_b32 v12, 1
    s_mov_b64 exec, 1
    ds_add_rtn_u32 v13, v63, v12 offset:{C2}
    s_mov_b64 exec, -1
    s_waitcnt lgkmcnt(0)
    v_readfirstlane_b32 s{sT0}, v13
    s_cmp_lg_u32 s{sT0}, 3
    s_cbranch_scc1 L_pubx
    ds_read_b128 v[16:19], v2 offset:{L_QS}
    ds_read_b128 v[20:23], v2 offset:{L_QS + 1024}
    s_lshl_b32 s{sT0}, s{sH}, 2
    s_add_u32 s{sT0}, s{sT0}, s{sB}
    s_add_u32 s{sT2}, s{sT0}, 128
    s_lshl_b32 s{sT0}, s{sT0}, 11
    s_add_u32 s{sT0}, s{sT0}, {W_QP}
    s_getreg_b32 s{sT1}, hwreg(HW_REG_XCC_ID)
    s_and_b32 s{sT1}, s{sT1}, 15
    s_or_b32 s{sT1}, s{sT1}, 0x80
    v_mov_b32 v12, s{sT1}
    v_mov_b32 v13, s{sT2}
    s_waitcnt lgkmcnt(0)
    buffer_store_dwordx4 v[16:19], v2, s[{SRD_WS}:{SRD_WS + 3}], s{sT0} offen
    buffer_store_dwordx4 v[20:23], v2, s[{SRD_WS}:{SRD_WS + 3}], s{sT0} offen offset:1024
    s_mov_b64 exec, 1
    s_waitcnt vmcnt(0)
    global_store_byte v13, v12, s[{sDBG}:{sDBG + 1}]
    s_mov_b64 exec, -1
    L_pubx:
    """)
    stamp(2)
    A(f"""
    s_cmp_lg_u32 s{sHW}, 0
    s_cbranch_scc1 L_waitdec
    s_getreg_b32 s{sT1}, hwreg(HW_REG_XCC_ID)
    s_and_b32 s{sT1}, s{sT1}, 15
    s_or_b32 s{sT1}, s{sT1}, 0x80
    s_mul_i32 s{sT1}, s{sT1}, 0x01010101
    s_lshl_b32 s{sT0}, s{sH}, 2
    s_add_u32 s{sT0}, s{sT0}, 128
    v_mov_b32 v13, s{sT0}
    L_qf:
    global_load_dword v12, v13, s[{sDBG}:{sDBG + 1}] sc1
    s_memrealtime s[{sT2}:{sT3}]
    s_waitcnt vmcnt(0) lgkmcnt(0)
    v_readfirstlane_b32 s{sT0}, v12
    s_cmp_eq_u32 s{sT0}, s{sT1}
    s_cbranch_scc1 L_qok
    s_sub_u32 s{sT2}, s{sT2}, s{sTS}
    s_cmp_lt_u32 s{sT2}, {qto}
    s_cbranch_scc1 L_qf
    v_mov_b32 v12, 2
    ds_write_b32 v63, v12 offset:{DEC}
    s_branch L_qfb
    L_qok:
    v_mov_b32 v12, 1
    ds_write_b32 v63, v12 offset:{DEC}
    v_lshrrev_b32 v14, 5, v1
    v_and_b32 v15, 31, v1
    v_lshlrev_b32 v14, 11, v14
    v_lshl_add_u32 v14, v15, 4, v14
    s_lshl_b32 s{sT0}, s{sH}, 13
    s_lshl_b32 s{sT1}, s{sB}, 9
    s_add_u32 s{sT0}, s{sT0}, s{sT1}
    s_add_u32 s{sT0}, s{sT0}, {W_QP}
    s_add_u32 s{sT1}, s{sT0}, 4096
    buffer_load_dwordx4 v[16:19], v14, s[{SRD_WS}:{SRD_WS + 3}], s{sT0} offen sc1
    buffer_load_dwordx4 v[20:23], v14, s[{SRD_WS}:{SRD_WS + 3}], s{sT1} offen sc1
    s_waitcnt vmcnt(1)
    ds_write_b128 v2, v[16:19] offset:{L_QP}
    s_waitcnt vmcnt(0)
    ds_write_b128 v2, v[20:23] offset:{L_QP + 1024}
    s_branch L_qdone
    L_waitdec:
    """)
    lds_spin(DEC, 1, "dec", 63, 12)
    A(f"""
    s_cmp_eq_u32 s{sT0}, 1
    s_cbranch_scc1 L_qdone
    L_qfb:
    s_lshl_b32 s{sT1}, s{sHW}, 20          ; 128*w' rows * 8192
    v_lshlrev_b32 v7, 18, v5               ; 32*g*8192
    v_lshl_add_u32 v7, v6, 4, v7
    """)
    for i in range(32):
        A(f"buffer_load_dwordx4 v[{W + 4 * i}:{W + 4 * i + 3}], v7, s[{SRD_T}:{SRD_T + 3}], s{sT1} offen {qnt}")
        if i < 31:
            A(f"s_add_u32 s{sT1}, s{sT1}, 8192")
    lds_spin(C1, 4, "c1b", 63, 12)
    A(f"""
    s_lshl_b32 s{sT0}, s{sHW}, 9
    s_lshl_b32 s{sT1}, s{sB}, 11
    s_add_u32 s{sT0}, s{sT0}, s{sT1}
    v_lshlrev_b32 v7, 7, v5
    v_add_u32 v7, s{sT0}, v7               ; b*2048 + (128w'+32g)*4
    """)
    for n in range(8):
        A(f"ds_read_b128 v[{64 + 4 * n}:{67 + 4 * n}], v7 offset:{L_XN4 + 16 * n}")
    for j in range(8):
        A(f"v_mov_b32 v{32 + j}, 0")
    A("s_waitcnt lgkmcnt(0)")
    for i in range(32):
        if i % 4 == 0:
            A(f"s_waitcnt vmcnt({28 - i})")
        A(f"v_lshrrev_b32 v{30 + (i & 1)}, 16, v{64 + i}")
        for q in range(4):
            A(f"v_dot2c_f32_bf16 v{32 + 2 * q + 1}, v{W + 4 * i + q}, v{64 + i}")
        for q in range(4):
            A(f"v_dot2c_f32_bf16 v{32 + 2 * q}, v{W + 4 * i + q}, v{30 + (i & 1)}")
    reduce8(32)
    A(f"""
    v_lshlrev_b32 v7, 5, v6
    v_lshl_add_u32 v7, v5, 2, v7
    s_lshl_b32 s{sT0}, s{sHW}, 9
    v_add_u32 v7, s{sT0}, v7
    ds_write_b32 v7, v32 offset:{L_QP}
    ds_write_b32 v7, v36 offset:{L_QP + 16}
    L_qdone:
    s_waitcnt lgkmcnt(0)
    s_barrier
    """)
    stamp(0)
    A(f"""
    s_mov_b32 s{sTAIL}, s{sR}
    s_cmp_eq_u32 s{sXC}, 0
    s_cselect_b32 s{sTAIL}, s{sTAIL}, -1
    s_cmp_lg_u32 s{sHW}, 0
    s_cbranch_scc1 L_noclear
    v_mov_b32 v8, -1
    v_mov_b32 v9, -1
    v_mov_b32 v10, -1
    v_mov_b32 v11, -1
    s_lshl_b32 s{sT0}, s{sH}, 13
    s_and_b32 s{sT1}, s{sR}, 7
    s_lshl_b32 s{sT1}, s{sT1}, 10
    s_add_u32 s{sT0}, s{sT0}, s{sT1}
    s_add_u32 s{sT0}, s{sT0}, {W_Y}
    {'' if 'c' in skip else f'''buffer_store_dwordx4 v[8:11], v2, s[{SRD_WS}:{SRD_WS + 3}], s{sT0} offen sc1'''}
    s_mov_b32 exec_lo, -1
    s_mov_b32 exec_hi, 0
    s_lshl_b32 s{sT0}, s2, 9
    s_add_u32 s{sT0}, s{sT0}, {W_OT}
    buffer_store_dwordx4 v[8:11], v2, s[{SRD_WS}:{SRD_WS + 3}], s{sT0} offen sc1
    s_mov_b64 exec, 1
    s_lshl_b32 s{sT0}, s{sR}, 7
    s_lshl_b32 s{sT1}, s{sXC}, 2
    s_add_u32 s{sT0}, s{sT0}, s{sT1}
    s_add_u32 s{sT0}, s{sT0}, {W_TM}
    buffer_store_dword v8, v2, s[{SRD_WS}:{SRD_WS + 3}], s{sT0} offen sc1
    s_getreg_b32 s{sT1}, hwreg(HW_REG_XCC_ID)
    s_and_b32 s{sT1}, s{sT1}, 15
    v_mov_b32 v12, s{sT1}
    s_lshl_b32 s{sT0}, s{sH}, 5
    s_and_b32 s{sT1}, s{sR}, 7
    s_lshl_b32 s{sT1}, s{sT1}, 2
    s_add_u32 s{sT0}, s{sT0}, s{sT1}
    s_add_u32 s{sT0}, s{sT0}, {W_XID + 1024}
    buffer_store_dword v12, v2, s[{SRD_WS}:{SRD_WS + 3}], s{sT0} offen sc1
    s_mov_b64 exec, 0xf
    s_lshl_b32 s{sT0}, s2, 7
    s_add_u32 s{sT1}, s{sT0}, {W_CNT}
    buffer_store_dwordx4 v[8:11], v2, s[{SRD_WS}:{SRD_WS + 3}], s{sT1} offen sc1
    s_mov_b64 exec, 0xff
    s_add_u32 s{sT0}, s{sT0}, {W_ML}
    {'' if 'c' in skip else f'''buffer_store_dwordx4 v[8:11], v2, s[{SRD_WS}:{SRD_WS + 3}], s{sT0} offen sc1'''}
    s_cmp_lg_u32 s{sXC}, 0
    s_cbranch_scc1 L_noclear2
    s_lshl_b32 s{sT0}, s{sR}, 7
    s_add_u32 s{sT0}, s{sT0}, {W_H}
    {'' if 'c' in skip else f'''buffer_store_dwordx4 v[8:11], v2, s[{SRD_WS}:{SRD_WS + 3}], s{sT0} offen sc1'''}
    s_mov_b64 exec, -1
    s_lshl_b32 s{sT0}, s{sR}, 13
    s_add_u32 s{sT0}, s{sT0}, {W_PO}
    s_add_u32 s{sT1}, s{sT0}, 4096
    {'' if 'c' in skip else f'''buffer_store_dwordx4 v[8:11], v2, s[{SRD_WS}:{SRD_WS + 3}], s{sT0} offen sc1'''}
    {'' if 'c' in skip else f'''buffer_store_dwordx4 v[8:11], v2, s[{SRD_WS}:{SRD_WS + 3}], s{sT0} offen offset:1024 sc1'''}
    {'' if 'c' in skip else f'''buffer_store_dwordx4 v[8:11], v2, s[{SRD_WS}:{SRD_WS + 3}], s{sT0} offen offset:2048 sc1'''}
    {'' if 'c' in skip else f'''buffer_store_dwordx4 v[8:11], v2, s[{SRD_WS}:{SRD_WS + 3}], s{sT0} offen offset:3072 sc1'''}
    {'' if 'c' in skip else f'''buffer_store_dwordx4 v[8:11], v2, s[{SRD_WS}:{SRD_WS + 3}], s{sT1} offen sc1'''}
    {'' if 'c' in skip else f'''buffer_store_dwordx4 v[8:11], v2, s[{SRD_WS}:{SRD_WS + 3}], s{sT1} offen offset:1024 sc1'''}
    {'' if 'c' in skip else f'''buffer_store_dwordx4 v[8:11], v2, s[{SRD_WS}:{SRD_WS + 3}], s{sT1} offen offset:2048 sc1'''}
    {'' if 'c' in skip else f'''buffer_store_dwordx4 v[8:11], v2, s[{SRD_WS}:{SRD_WS + 3}], s{sT1} offen offset:3072 sc1'''}
    s_mov_b64 exec, 1
    s_getreg_b32 s{sT1}, hwreg(HW_REG_XCC_ID)
    s_and_b32 s{sT1}, s{sT1}, 15
    v_mov_b32 v12, s{sT1}
    s_lshl_b32 s{sT0}, s{sR}, 2
    s_add_u32 s{sT0}, s{sT0}, {W_XID}
    buffer_store_dword v12, v2, s[{SRD_WS}:{SRD_WS + 3}], s{sT0} offen sc1
    L_noclear2:
    s_mov_b64 exec, 1
    v_mov_b32 v12, 1
    v_mov_b32 v13, 0
    s_waitcnt vmcnt(0)
    global_atomic_add v13, v12, s[{sDBG}:{sDBG + 1}]
    s_mov_b64 exec, -1
    L_noclear:
    """)
    A(f"""
    s_lshl_b32 s{sT0}, s{sH}, 17
    s_and_b32 s{sT1}, s{sR}, 7
    s_lshl_b32 s{sT1}, s{sT1}, 7
    s_add_u32 s{sT0}, s{sT0}, s{sT1}
    s_add_u32 s{SRD_T}, s{sWO}, s{sT0}
    s_addc_u32 s{SRD_T + 1}, s{sWO + 1}, 0
    s_sub_u32 s{SRD_T + 2}, 0x400000, s{sT0}
    v_lshrrev_b32 v8, 3, v1
    v_and_b32 v9, 7, v1
    v_lshlrev_b32 v7, 10, v8
    v_lshl_add_u32 v7, v9, 4, v7
    s_lshl_b32 s{sT1}, s{sHW}, 15          ; 32 w' rows * 1024
    """)
    for i in range(4):
        A(f"buffer_load_dwordx4 v[{W + 4 * i}:{W + 4 * i + 3}], v7, s[{SRD_T}:{SRD_T + 3}], s{sT1} offen {WNT}")
        A(f"s_add_u32 s{sT1}, s{sT1}, 8192")
    A(f"""
    v_mul_u32_u24 v7, {WO_P}, v8
    v_lshl_add_u32 v7, v9, 4, v7
    s_mul_i32 s{sT0}, s{sHW}, {32 * WO_P}
    s_add_u32 s{sT0}, s{sT0}, {L_WO}
    v_add_u32 v7, s{sT0}, v7
    """)
    for i in range(4):
        A(f"s_waitcnt vmcnt({3 - i})")
        A(f"ds_write_b128 v7, v[{W + 4 * i}:{W + 4 * i + 3}] offset:{8 * WO_P * i}")
    F1 = 128
    F2 = 64
    XR = 63
    A(f"""
    s_cmp_lg_u32 s{sXC}, 0
    s_cbranch_scc1 L_noffn
    s_lshl_b32 s{sT0}, s{sR}, 5
    v_lshlrev_b32 v8, 10, v5
    v_lshl_add_u32 v8, v6, 1, v8
    v_add_u32 v8, s{sT0}, v8
    global_load_ushort v{XR}, v8, s[{sX}:{sX + 1}]
    s_cmp_ge_u32 s{sR}, {0 if 'f' in skip else 28}
    s_cbranch_scc1 L_noffn1
    s_waitcnt lgkmcnt(0)
    s_mov_b32 s{SRD_T}, s{sWD}
    s_mov_b32 s{SRD_T + 1}, s{sWD + 1}
    s_mov_b32 s{SRD_T + 2}, {1792 * 1024}
    v_lshlrev_b32 v7, 10, v5
    v_lshl_add_u32 v7, v6, 4, v7           ; g*1024 + c*16
    s_lshl_b32 s{sT0}, s{sR}, 16
    s_lshl_b32 s{sT1}, s{sHW}, 8
    s_add_u32 s{sT1}, s{sT1}, s{sT0}
    """)
    for i in range(16):
        A(f"buffer_load_dwordx4 v[{F2 + 4 * i}:{F2 + 4 * i + 3}], v7, s[{SRD_T}:{SRD_T + 3}], s{sT1} offen {WNT}")
        A(f"s_add_u32 s{sT1}, s{sT1}, 4096")
    A(f"""
    v_lshrrev_b32 v8, 3, v1
    v_and_b32 v9, 7, v1
    v_mul_u32_u24 v7, 3584, v8
    v_lshl_add_u32 v7, v9, 4, v7
    s_mov_b32 s{SRD_T + 2}, {512 * 3584}
    """)
    for m, sp in enumerate((sWG, sWU)):
        A(f"""
        s_mov_b32 s{SRD_T}, s{sp}
        s_mov_b32 s{SRD_T + 1}, s{sp + 1}
        s_mul_i32 s{sT1}, s{sHW}, {128 * 3584}
        s_lshl_b32 s{sT0}, s{sR}, 7
        s_add_u32 s{sT1}, s{sT1}, s{sT0}
        """)
        for i in range(16):
            r = F1 + 64 * m + 4 * i
            A(f"buffer_load_dwordx4 v[{r}:{r + 3}], v7, s[{SRD_T}:{SRD_T + 3}], s{sT1} offen {WNT}")
            A(f"s_add_u32 s{sT1}, s{sT1}, {8 * 3584}")
    A(f"""
    s_mul_i32 s{sT0}, s{sHW}, {STG_SZ}
    s_add_u32 s{sT0}, s{sT0}, {L_STG}
    v_mul_u32_u24 v10, 288, v5
    v_lshl_add_u32 v10, v6, 4, v10
    v_add_u32 v10, s{sT0}, v10             ; wd staging write: g*288 + c*16
    v_mul_u32_u24 v11, 160, v8
    v_lshl_add_u32 v11, v9, 4, v11
    v_add_u32 v11, s{sT0}, v11             ; g/u staging write: (l>>3)*160 + (l&7)*16
    v_lshrrev_b32 v12, 2, v6
    v_lshl_add_u32 v12, v5, 2, v12         ; row = 4g + (c>>2)
    v_and_b32 v13, 3, v6
    v_lshlrev_b32 v13, 3, v13
    v_add_u32 v13, s{sT0}, v13
    v_mad_u32_u24 v14, v12, 288, v13       ; invalid literal? replaced below
    """.replace("v_mad_u32_u24 v14, v12, 288, v13       ; invalid literal? replaced below",
                "v_mul_u32_u24 v14, 288, v12\nv_add_u32 v14, v14, v13\nv_mul_u32_u24 v15, 160, v12\nv_add_u32 v15, v15, v13"))
    for ks in range(2):
        A(f"s_waitcnt vmcnt({32 + 8 - 8 * ks})")
        for i in range(8):
            r = F2 + 32 * ks + 4 * i
            A(f"ds_write_b128 v10, v[{r}:{r + 3}] offset:{4 * 288 * i}")
        for nt in range(8):
            r = F2 + 32 * ks + 4 * nt
            A(f"ds_read_b64_tr_b16 v[{r}:{r + 1}], v14 offset:{32 * nt}")
            A(f"ds_read_b64_tr_b16 v[{r + 2}:{r + 3}], v14 offset:{16 * 288 + 32 * nt}")
    for ms in range(8):
        A(f"s_waitcnt vmcnt({28 - 4 * ms})")
        for i in range(4):
            r = F1 + 16 * ms + 4 * i
            A(f"ds_write_b128 v11, v[{r}:{r + 3}] offset:{8 * 160 * i}")
        for nt in range(4):
            r = F1 + 16 * ms + 4 * nt
            A(f"ds_read_b64_tr_b16 v[{r}:{r + 1}], v15 offset:{32 * nt}")
            A(f"ds_read_b64_tr_b16 v[{r + 2}:{r + 3}], v15 offset:{16 * 160 + 32 * nt}")
    A(f"""
    L_noffn1:
    s_waitcnt vmcnt(0)
    L_noffn:
    s_waitcnt lgkmcnt(0)
    """)
    A(f"""
    s_mov_b32 s{sLOCH}, 0
    s_cmp_lg_u32 s{sHW}, 0
    s_cbranch_scc1 L_noarr
    v_add_u32 v8, 5, v1
    v_lshlrev_b32 v9, 9, v8
    v_lshlrev_b32 v8, 15, v8
    s_lshl_b32 s{sT0}, s{sXC}, 21
    v_add_u32 v8, s{sT0}, v8
    v_add_u32 v9, {L_SC}, v9
    v_mov_b32 v10, s{sXC}
    s_or_b32 s{sT0}, s{sXC}, 0x200
    v_mov_b32 v11, s{sT0}
    v_cmp_eq_u32 vcc, {drow - 5 if drow else 63}, v1
    v_cndmask_b32 v10, v10, v11, vcc
    v_mov_b32 v11, 0
    v_cmp_gt_u32 vcc, {PST - 5}, v1
    v_cndmask_b32 v8, -2, v8, vcc
    v_add_u32 v12, {L_TAB}, v2
    ds_write_b128 v12, v[8:11]
    v_mov_b32 v17, 0
    s_mov_b32 s{sSPIN}, 0
    {chr(10).join(['s_sleep 127'] * apre)}
    L_arr:
    {'s_sleep ' + str(asleep) if asleep else ''}
    global_load_dword v24, v17, s[{sDBG}:{sDBG + 1}] sc1
    s_waitcnt vmcnt(0)
    v_readfirstlane_b32 s{sT0}, v24
    s_add_u32 s{sSPIN}, s{sSPIN}, 1
    s_cmp_gt_u32 s{sSPIN}, {SPIN}
    s_cbranch_scc1 L_noarr
    s_cmp_lt_u32 s{sT0}, 256
    s_cbranch_scc1 L_arr
    v_and_b32 v8, 7, v1
    v_lshlrev_b32 v8, 2, v8
    s_lshl_b32 s{sT0}, s{sH}, 5
    s_add_u32 s{sT0}, s{sT0}, {W_XID + 1024}
    buffer_load_dword v9, v8, s[{SRD_WS}:{SRD_WS + 3}], s{sT0} offen sc1
    s_waitcnt vmcnt(0)
    v_readfirstlane_b32 s{sT1}, v9
    v_cmp_ne_u32 vcc, s{sT1}, v9
    s_cmp_eq_u64 vcc, 0
    s_cselect_b32 s{sLOCH}, {1 if local else 0}, 0
    L_noarr:
    s_waitcnt lgkmcnt(0)
    """)
    stamp()
    TMPUB = f"""
    s_mov_b64 exec, 1
    s_and_b32 s{sT2}, s{sTS}, 0x7fffffff
    v_mov_b32 v30, 0
    v_mov_b32 v24, s{sT2}
    s_lshl_b32 s{sT0}, s{sR}, 7
    s_lshl_b32 s{sT1}, s{sXC}, 2
    s_add_u32 s{sT0}, s{sT0}, s{sT1}
    s_add_u32 s{sT0}, s{sT0}, {W_TM}
    buffer_store_dword v24, v30, s[{SRD_WS}:{SRD_WS + 3}], s{sT0} offen sc1
    s_mov_b64 exec, -1
    """
    TMPUB0 = '' if drow else TMPUB
    midphase_common(8, 16)
    stamp()
    A(f"""
    s_cmp_lg_u32 s{sHW}, 0
    s_cbranch_scc1 L_noex
    s_memrealtime s[{sTS}:{sTS + 1}]
    ds_read_b128 v[24:27], v17 offset:{L_MISC + 32}
    ds_read_b128 v[28:31], v17 offset:{L_MISC + 48}
    s_waitcnt lgkmcnt(0)
    v_add_f32 v24, v24, v25
    v_add_f32 v26, v26, v27
    v_add_f32 v28, v28, v29
    v_add_f32 v30, v30, v31
    v_add_f32 v24, v24, v26
    v_add_f32 v28, v28, v30
    v_add_f32 v21, v24, v28
    s_mov_b64 exec, 1
    s_lshl_b32 s{sT0}, s2, 7
    s_add_u32 s{sT0}, s{sT0}, {W_ML}
    """)
    pub_store([f"buffer_store_dwordx2 v[20:21], v17, s[{SRD_WS}:{SRD_WS + 3}], s{sT0} offen"], sLOCH)
    A(f"""
    s_mov_b64 exec, -1
    {TMPUB0}
    s_xor_b32 s{sT1}, s2, 8
    s_lshl_b32 s{sT1}, s{sT1}, 7
    s_add_u32 s{sT1}, s{sT1}, {W_ML}
    """)
    poll([f"buffer_load_dwordx2 v[24:25], v17, s[{SRD_WS}:{SRD_WS + 3}], s{sT1} offen sc1"], [24, 25], "ml")
    A(f"""
    v_max_f32 v26, v20, v24            ; m
    v_sub_f32 v27, v20, v26
    v_sub_f32 v28, v24, v26
    v_mul_f32 v27, s{sLOG2E}, v27
    v_mul_f32 v28, s{sLOG2E}, v28
    v_exp_f32 v27, v27
    v_exp_f32 v28, v28
    v_mul_f32 v29, v21, v27
    v_mul_f32 v30, v25, v28
    v_add_f32 v29, v29, v30            ; l
    v_rcp_f32 v30, v29
    v_mul_f32 v31, v27, v30
    v_fma_f32 v24, -v31, v29, v27
    v_fma_f32 v31, v24, v30, v31       ; c = f/l
    ds_write_b32 v17, v31 offset:{L_MISC + 64}
    s_waitcnt lgkmcnt(0)
    L_noex:
    """)
    stamp()
    midphase_end(8, 16)
    if local:
        A(f"""
        s_mov_b32 s{sLOCAL}, 0
        s_cmp_lg_u32 s{sXC}, 0
        s_cbranch_scc1 L_noloc
        v_and_b32 v8, 31, v1
        v_lshlrev_b32 v8, 2, v8
        s_mov_b32 s{sT0}, {W_XID}
        buffer_load_dword v9, v8, s[{SRD_WS}:{SRD_WS + 3}], s{sT0} offen sc1
        s_waitcnt vmcnt(0)
        v_readfirstlane_b32 s{sT1}, v9
        v_cmp_ne_u32 vcc, s{sT1}, v9
        s_cmp_eq_u64 vcc, 0
        s_cselect_b32 s{sLOCAL}, 1, 0
        L_noloc:
        """)
    sD0, sDN, sR0, sRN, sE, sJ, sMK, sKK = 66, 67, 68, 69, 71, 100, 101, 58
    A(f"""
    s_cmp_lg_u32 s{sHW}, 0
    s_cbranch_scc1 L_noplan
    """)
    if drow:
        A(f"""
        v_mov_b32 v30, 0
        s_mov_b32 s{sSPIN}, 0
        L_wdec:
        s_sleep 2
        ds_read_b32 v19, v30 offset:{L_MISC + 148}
        s_waitcnt lgkmcnt(0)
        v_readfirstlane_b32 s{sT0}, v19
        s_add_u32 s{sSPIN}, s{sSPIN}, 1
        s_cmp_gt_u32 s{sSPIN}, {SPIN * 20}
        s_cbranch_scc1 L_wdecx
        s_cmp_eq_u32 s{sT0}, 0
        s_cbranch_scc1 L_wdec
        L_wdecx:
        s_memrealtime s[{sTS}:{sTS + 1}]
        s_waitcnt lgkmcnt(0)
        """)
        A(TMPUB)
    A(f"""
    v_and_b32 v8, 7, v1
    v_lshlrev_b32 v9, 2, v8
    s_lshl_b32 s{sT0}, s{sR}, 7
    s_add_u32 s{sT0}, s{sT0}, {W_TM}
    """)
    poll([f"buffer_load_dword v10, v9, s[{SRD_WS}:{SRD_WS + 3}], s{sT0} offen sc1"], [10], "tm", sleep=tsl)
    A(f"""
    v_readfirstlane_b32 s{sT0}, v10
    v_subrev_u32 v10, s{sT0}, v10
    v_lshlrev_b32 v10, 1, v10
    v_ashrrev_i32 v10, 1, v10
    v_cvt_f32_i32 v10, v10
    v_add_f32_dpp v11, v10, v10 row_ror:1 row_mask:0xf bank_mask:0xf
    v_add_f32_dpp v11, v11, v11 row_ror:2 row_mask:0xf bank_mask:0xf
    v_add_f32_dpp v11, v11, v11 row_ror:4 row_mask:0xf bank_mask:0xf
    v_readfirstlane_b32 s{sT0}, v11
    v_mov_b32 v11, s{sT0}
    s_mov_b32 s{sT1}, 0xbe000000
    v_fma_f32 v10, v11, s{sT1}, v10        ; t - mean
    v_mul_f32 v10, 0x{ROWRATE:08x}, v10
    v_rndne_f32 v10, v10
    v_cvt_i32_f32 v10, v10
    v_max_i32 v11, 0, v10
    v_min_i32 v11, {GMAX}, v11             ; d
    v_sub_u32 v12, 0, v10
    v_max_i32 v12, 0, v12
    v_min_i32 v12, {GMAX}, v12             ; r
    v_cmp_gt_u32 vcc, 8, v1
    v_cndmask_b32 v11, 0, v11, vcc
    v_cndmask_b32 v12, 0, v12, vcc
    v_mov_b32 v13, v11
    v_mov_b32 v14, v12
    """)
    for sh_ in (1, 2, 4):
        A(f"v_add_u32_dpp v13, v13, v13 row_shr:{sh_} row_mask:0xf bank_mask:0xf bound_ctrl:0")
        A(f"v_add_u32_dpp v14, v14, v14 row_shr:{sh_} row_mask:0xf bank_mask:0xf bound_ctrl:0")
    A(f"""
    v_readlane_b32 s{sT0}, v13, 7
    v_readlane_b32 s{sT1}, v14, 7
    v_sub_u32 v13, v13, v11                ; D excl
    v_sub_u32 v14, v14, v12                ; R excl
    s_min_u32 s{sT0}, s{sT0}, s{sT1}
    v_sub_u32 v15, s{sT0}, v13
    v_max_i32 v15, 0, v15
    v_min_i32 v11, v11, v15                ; d'
    v_sub_u32 v15, s{sT0}, v14
    v_max_i32 v15, 0, v15
    v_min_i32 v12, v12, v15                ; r'
    v_add_u32 v16, v13, v11                ; D end
    v_add_u32 v17, v14, v12                ; R end
    v_readlane_b32 s{sD0}, v13, s{sXC}
    v_readlane_b32 s{sDN}, v11, s{sXC}
    v_readlane_b32 s{sR0}, v14, s{sXC}
    v_readlane_b32 s{sRN}, v12, s{sXC}
    v_mov_b32 v30, 0
    v_mov_b32 v31, {L_TAB + (PST - 5) * 16}
    s_mov_b32 s{sMK}, 0
    s_cmp_eq_u32 s{sDN}, 0
    s_cbranch_scc1 L_nodon
    s_lshl_b32 s{sT0}, s2, 12
    s_add_u32 s{sT0}, s{sT0}, {W_P}
    """)
    NK = (GMAX + 1) // 2
    for k in range(NK):
        A(f"ds_read_b128 v[{32 + 4 * k}:{35 + 4 * k}], v2 offset:{L_SC + (30 - 2 * k) * 512}")
    A("s_waitcnt lgkmcnt(0)")
    for k in range(NK):
        if k:
            A(f"s_cmp_le_u32 s{sDN}, {2 * k}")
            A("s_cbranch_scc1 L_donx")
        A(f"buffer_store_dwordx4 v[{32 + 4 * k}:{35 + 4 * k}], v2, s[{SRD_WS}:{SRD_WS + 3}], s{sT0} offen offset:{(6 - 2 * k) * 512} sc1")
    A(f"""
    L_donx:
    s_mov_b64 exec, 1
    s_lshl_b32 s{sT0}, s2, 7
    s_add_u32 s{sT0}, s{sT0}, {W_CNT + 16}
    s_waitcnt vmcnt(0)
    buffer_store_dword v30, v30, s[{SRD_WS}:{SRD_WS + 3}], s{sT0} offen sc1
    s_mov_b64 exec, -1
    L_nodon:
    v_and_b32 v18, 31, v1
    v_lshlrev_b32 v18, 4, v18
    v_lshlrev_b32 v25, 9, v1
    v_add_u32 v25, {L_EXT}, v25
    v_mov_b32 v24, 0
    v_mov_b32 v26, 0
    v_mov_b32 v27, 0
    s_cmp_eq_u32 s{sRN}, 0
    s_cbranch_scc1 L_rcvx
    """)
    for e in range(GMAX):
        if e:
            A(f"s_cmp_le_u32 s{sRN}, {e}")
            A("s_cbranch_scc1 L_rcvy")
        A(f"""
        s_add_u32 s{sKK}, s{sR0}, {e}
        v_cmp_ge_u32 vcc, s{sKK}, v13
        v_cmp_lt_u32 s[{sT2}:{sT3}], s{sKK}, v16
        s_and_b64 vcc, vcc, s[{sT2}:{sT3}]
        s_and_b32 s{sT0}, vcc_lo, 0xff
        s_ff1_i32_b32 s{sJ}, s{sT0}
        s_and_b32 s{sJ}, s{sJ}, 7
        v_readlane_b32 s{sT0}, v13, s{sJ}
        s_sub_u32 s{sKK}, s{sKK}, s{sT0}
        s_sub_u32 s{sKK}, 31, s{sKK}
        s_lshl_b32 s{sT0}, s{sR}, 3
        s_add_u32 s{sE}, s{sT0}, s{sJ}
        s_bitcmp1_b32 s{sMK}, s{sJ}
        s_cbranch_scc1 L_nopf{e}
        s_bitset1_b32 s{sMK}, s{sJ}
        s_lshl_b32 s{sT0}, s{sE}, 7
        s_add_u32 s{sT0}, s{sT0}, {W_CNT + 16}
        s_mov_b32 s{sSPIN}, 0
        L_pf{e}:
        buffer_load_dword v19, v30, s[{SRD_WS}:{SRD_WS + 3}], s{sT0} offen sc1
        s_waitcnt vmcnt(0)
        v_readfirstlane_b32 s{sT1}, v19
        s_add_u32 s{sSPIN}, s{sSPIN}, 1
        s_cmp_gt_u32 s{sSPIN}, {SPIN}
        s_cbranch_scc1 L_nopf{e}
        s_cmp_eq_u32 s{sT1}, -1
        s_cbranch_scc1 L_pf{e}
        L_nopf{e}:
        s_lshl_b32 s{sT1}, s{sE}, 12
        s_lshl_b32 s{sT0}, s{sKK}, 9
        s_add_u32 s{sT1}, s{sT1}, s{sT0}
        s_add_u32 s{sT1}, s{sT1}, {W_P - 24 * 512}
        buffer_load_dwordx4 v[{32 + 4 * e}:{35 + 4 * e}], v18, s[{SRD_WS}:{SRD_WS + 3}], s{sT1} offen sc1
        s_lshl_b32 s{sKK}, s{sKK}, 15
        s_lshl_b32 s{sT0}, s{sJ}, 21
        s_add_u32 s{sKK}, s{sKK}, s{sT0}
        v_writelane_b32 v24, s{sKK}, {e}
        v_writelane_b32 v26, s{sJ}, {e}
        """)
    A(f"""
    L_rcvy:
    v_add_u32 v19, {L_EXT}, v18
    s_waitcnt vmcnt(0)
    """)
    for e in range(GMAX):
        A(f"ds_write_b128 v19, v[{32 + 4 * e}:{35 + 4 * e}] offset:{512 * e}")
    A(f"""
    v_add_u32 v19, v31, v2
    s_lshl_b32 s{sT0}, 1, s{sRN}
    s_sub_u32 s{sT0}, s{sT0}, 1
    s_mov_b32 exec_lo, s{sT0}
    s_mov_b32 exec_hi, 0
    ds_write_b128 v19, v[24:27]
    s_mov_b64 exec, -1
    s_lshl_b32 s{sT0}, s{sRN}, 4
    v_add_u32 v31, s{sT0}, v31
    L_rcvx:
    v_add_u32 v24, {PST}, v1
    v_lshlrev_b32 v25, 9, v24
    v_lshlrev_b32 v24, 15, v24
    s_lshl_b32 s{sT0}, s{sXC}, 21
    v_add_u32 v24, s{sT0}, v24
    v_add_u32 v25, {L_SC}, v25
    s_or_b32 s{sT1}, s{sXC}, 0x100
    v_mov_b32 v26, s{sXC}
    v_mov_b32 v28, s{sT1}
    v_cmp_eq_u32 vcc, 0, v1
    v_cndmask_b32 v26, v26, v28, vcc
    s_cmp_eq_u32 s{sRN}, 0
    s_cbranch_scc0 L_keepflag
    v_mov_b32 v26, s{sXC}
    L_keepflag:
    v_mov_b32 v27, 0
    s_sub_u32 s{sT0}, {32 - PST}, s{sDN}
    v_cmp_gt_u32 vcc, s{sT0}, v1
    v_cndmask_b32 v24, -1, v24, vcc
    v_add_u32 v19, v31, v2
    s_mov_b64 exec, 0x{(1 << (33 - PST)) - 1:x}
    ds_write_b128 v19, v[24:27]
    s_mov_b64 exec, -1
    s_cmp_eq_u32 s{sRN}, 0
    s_cbranch_scc1 L_nosend
    s_mov_b32 s{sSPIN}, 0
    L_wsig:
    s_sleep 4
    ds_read_b32 v19, v30 offset:{L_MISC + 132}
    s_waitcnt lgkmcnt(0)
    v_readfirstlane_b32 s{sT0}, v19
    s_add_u32 s{sSPIN}, s{sSPIN}, 1
    s_cmp_gt_u32 s{sSPIN}, {SPIN * 20}
    s_cbranch_scc1 L_snd
    s_cmp_lt_u32 s{sT0}, 4
    s_cbranch_scc1 L_wsig
    L_snd:
    s_ff1_i32_b32 s{sJ}, s{sMK}
    s_lshl_b32 s{sT0}, 1, s{sJ}
    s_xor_b32 s{sMK}, s{sMK}, s{sT0}
    s_lshl_b32 s{sT0}, s{sJ}, 9
    v_add_u32 v19, s{sT0}, v18
    ds_read_b128 v[20:23], v19 offset:{L_ACC}
    s_lshl_b32 s{sT0}, s{sR}, 3
    s_add_u32 s{sT0}, s{sT0}, s{sJ}
    s_lshl_b32 s{sT0}, s{sT0}, 12
    s_lshl_b32 s{sT1}, s{sXC}, 9
    s_add_u32 s{sT0}, s{sT0}, s{sT1}
    s_add_u32 s{sT0}, s{sT0}, {W_O}
    s_mov_b32 exec_hi, 0
    s_waitcnt lgkmcnt(0)
    buffer_store_dwordx4 v[20:23], v18, s[{SRD_WS}:{SRD_WS + 3}], s{sT0} offen sc1
    s_lshl_b32 s{sT0}, s{sR}, 3
    s_add_u32 s{sT0}, s{sT0}, s{sJ}
    s_lshl_b32 s{sT0}, s{sT0}, 7
    s_lshl_b32 s{sT1}, s{sXC}, 2
    s_add_u32 s{sT0}, s{sT0}, s{sT1}
    s_add_u32 s{sT0}, s{sT0}, {W_CNT + 32}
    s_mov_b64 exec, 1
    s_waitcnt vmcnt(0)
    buffer_store_dword v30, v30, s[{SRD_WS}:{SRD_WS + 3}], s{sT0} offen sc1
    s_mov_b64 exec, -1
    s_cmp_lg_u32 s{sMK}, 0
    s_cbranch_scc1 L_snd
    L_nosend:
    s_cmp_eq_u32 s{sDN}, 0
    s_cbranch_scc1 L_noplan
    s_add_u32 s{sT0}, s{sD0}, s{sDN}
    v_cmp_gt_u32 vcc, s{sT0}, v14
    v_cmp_lt_u32 s[{sT2}:{sT3}], s{sD0}, v17   ; D0 < R end
    s_and_b64 vcc, vcc, s[{sT2}:{sT3}]
    v_cmp_lt_u32 s[{sT2}:{sT3}], 0, v12
    s_and_b64 vcc, vcc, s[{sT2}:{sT3}]
    s_and_b32 s{sMK}, vcc_lo, 0xff
    s_lshl_b32 s{sT0}, s{sXC}, 9
    v_add_u32 v29, s{sT0}, v18
    L_col:
    s_ff1_i32_b32 s{sJ}, s{sMK}
    s_lshl_b32 s{sT0}, 1, s{sJ}
    s_xor_b32 s{sMK}, s{sMK}, s{sT0}
    s_lshl_b32 s{sT0}, s2, 7
    s_lshl_b32 s{sT1}, s{sJ}, 2
    s_add_u32 s{sT0}, s{sT0}, s{sT1}
    s_add_u32 s{sT0}, s{sT0}, {W_CNT + 32}
    """)
    poll([f"buffer_load_dword v19, v30, s[{SRD_WS}:{SRD_WS + 3}], s{sT0} offen sc1"], [19], "in", sleep=isl)
    A(f"""
    s_lshl_b32 s{sT0}, s2, 12
    s_lshl_b32 s{sT1}, s{sJ}, 9
    s_add_u32 s{sT0}, s{sT0}, s{sT1}
    s_add_u32 s{sT0}, s{sT0}, {W_O}
    buffer_load_dwordx4 v[20:23], v18, s[{SRD_WS}:{SRD_WS + 3}], s{sT0} offen sc1
    s_waitcnt vmcnt(0)
    s_mov_b32 exec_hi, 0
    ds_add_f32 v29, v20 offset:{L_ACC}
    ds_add_f32 v29, v21 offset:{L_ACC + 4}
    ds_add_f32 v29, v22 offset:{L_ACC + 8}
    ds_add_f32 v29, v23 offset:{L_ACC + 12}
    s_mov_b64 exec, -1
    s_cmp_lg_u32 s{sMK}, 0
    s_waitcnt lgkmcnt(0)
    s_cbranch_scc1 L_col
    L_noplan:
    s_waitcnt lgkmcnt(0)
    """)
    WF = 40
    HK = 62
    A(f"""
    v_lshrrev_b32 v8, 2, v6                ; i>>2
    v_lshl_add_u32 v8, v5, 2, v8           ; row = 4g + (i>>2)
    v_mul_u32_u24 v8, {WO_P}, v8
    v_and_b32 v9, 3, v6
    v_lshl_add_u32 v8, v9, 3, v8
    s_lshl_b32 s{sT0}, s{sHW}, 5
    s_add_u32 s{sT0}, s{sT0}, {L_WO}
    v_add_u32 v8, s{sT0}, v8
    """)
    for s_ in range(4):
        A(f"ds_read_b64_tr_b16 v[{WF + 4 * s_}:{WF + 4 * s_ + 1}], v8 offset:{32 * s_ * WO_P}")
        A(f"ds_read_b64_tr_b16 v[{WF + 4 * s_ + 2}:{WF + 4 * s_ + 3}], v8 offset:{(32 * s_ + 16) * WO_P}")
    A(f"""
    v_lshrrev_b32 v10, 5, v1
    v_and_b32 v11, 31, v1
    v_lshlrev_b32 v36, 12, v10
    v_lshl_add_u32 v36, v11, 4, v36
    s_mul_i32 s{sT0}, s{sHW}, {OB_P}
    v_lshlrev_b32 v37, 3, v11
    v_add_u32 v37, s{sT0}, v37
    v_mul_u32_u24 v38, {OB_P}, v9
    v_lshl_add_u32 v38, v5, 3, v38
    v_add_u32 v38, {L_OB}, v38
    s_lshl_b32 s{sT0}, s{sXC}, 9
    v_lshl_add_u32 v39, v11, 4, s{sT0}
    v_lshlrev_b32 v35, 4, v6               ; v35: c*16
    s_lshl_b32 s{sKOFF}, s{sXC}, 9
    s_lshl_b32 s{sT0}, s{sHL}, 15
    s_add_u32 s{sKOFF}, s{sKOFF}, s{sT0}
    s_lshl_b32 s{sT0}, s{sHW}, 13
    s_add_u32 s{sKOFF}, s{sKOFF}, s{sT0}
    s_add_u32 s{sKOFF}, s{sKOFF}, {W_OT}
    s_lshl_b32 s{sVOFF}, s{sH}, 13
    s_and_b32 s{sT0}, s{sR}, 7
    s_lshl_b32 s{sT0}, s{sT0}, 10
    s_add_u32 s{sVOFF}, s{sVOFF}, s{sT0}
    s_lshl_b32 s{sT0}, s{sHW}, 8
    s_add_u32 s{sVOFF}, s{sVOFF}, s{sT0}
    s_add_u32 s{sVOFF}, s{sVOFF}, {W_Y}
    """)
    if warm:
        A(f"""
        s_getpc_b64 s[{sT2}:{sT3}]
        s_min_u32 s{sT0}, s{sHW}, 2
        s_lshl_b32 s{sT0}, s{sT0}, 10
        v_add_u32 v8, s{sT0}, v2
        global_load_dwordx4 v[12:15], v8, s[{sT2}:{sT3}]
        s_waitcnt vmcnt(0)
        """)
    A(f"""
    s_waitcnt lgkmcnt(0)
    s_barrier
    """)
    stamp()
    stamp(3)
    A(f"""
    s_cmp_lg_u32 s{sHW}, 0
    s_cbranch_scc1 L_nopub
    ds_read_b128 v[8:11], v39 offset:{L_ACC}
    s_mov_b32 exec_hi, 0
    s_lshl_b32 s{sT0}, s2, 9
    s_add_u32 s{sT0}, s{sT0}, {W_OT}
    s_waitcnt lgkmcnt(0)
    """)
    pub_store([f"buffer_store_dwordx4 v[8:11], v2, s[{SRD_WS}:{SRD_WS + 3}], s{sT0} offen"], sLOCH)
    A(f"""
    s_mov_b64 exec, -1
    L_nopub:
    """)
    poll([f"buffer_load_dwordx4 v[16:19], v36, s[{SRD_WS}:{SRD_WS + 3}], s{sKOFF} offen sc1"], [16, 17, 18, 19], "o")
    for j in range(4):
        A(f"v_mov_b32 v{20 + j}, v{16 + j}")
    for j in range(4):
        A(f"v_permlane32_swap_b32 v{16 + j}, v{20 + j}")
    for j in range(4):
        A(f"v_add_f32 v{16 + j}, v{16 + j}, v{20 + j}")
    A(f"""
    v_cvt_pk_bf16_f32 v16, v16, v17
    v_cvt_pk_bf16_f32 v17, v18, v19
    ds_write_b64 v37, v[16:17] offset:{L_OB}
    s_waitcnt lgkmcnt(0)
    s_barrier
    """)
    stamp()
    for s_ in range(4):
        A(f"ds_read2_b64 v[{16 + 4 * s_}:{19 + 4 * s_}], v38 offset0:{8 * s_} offset1:{8 * s_ + 4}")
    for s_ in range(4):
        A(f"s_waitcnt lgkmcnt({0 if stamps else 3 - s_})")
        A(f"v_mfma_f32_16x16x32_bf16 v[8:11], v[{16 + 4 * s_}:{19 + 4 * s_}], v[{WF + 4 * s_}:{WF + 4 * s_ + 3}], {'0' if s_ == 0 else 'v[8:11]'}")
    A(f"""
    s_mov_b64 exec, 0xffff
    buffer_store_dwordx4 v[8:11], v35, s[{SRD_WS}:{SRD_WS + 3}], s{sVOFF} offen sc1
    s_mov_b64 exec, -1
    """)
    stamp()
    stamp(3)
    A(f"""
    s_cmp_lg_u32 s{sXC}, 0
    s_cbranch_scc1 L_fin
    """)
    A(f"""
    s_lshl_b32 s{sT0}, s{sHW}, 16
    s_lshl_b32 s{sT1}, s{sR}, 8
    s_add_u32 s{sT0}, s{sT0}, s{sT1}
    s_add_u32 s{sT0}, s{sT0}, {W_Y}
    s_add_u32 s{sT1}, s{sT0}, 32768
    v_lshlrev_b32 v12, 13, v5
    v_lshl_add_u32 v12, v6, 4, v12
    """)
    poll([f"buffer_load_dwordx4 v[16:19], v12, s[{SRD_WS}:{SRD_WS + 3}], s{sT0} offen sc1",
          f"buffer_load_dwordx4 v[20:23], v12, s[{SRD_WS}:{SRD_WS + 3}], s{sT1} offen sc1"], list(range(16, 24)), "y")
    stamp()
    stamp(3)
    A(f"""
    v_add_f32 v16, v16, v20
    v_add_f32 v17, v17, v21
    v_add_f32 v18, v18, v22
    v_add_f32 v19, v19, v23
    v_permlane16_swap_b32 v16, v17
    v_permlane16_swap_b32 v18, v19
    v_add_f32 v16, v16, v17
    v_add_f32 v18, v18, v19
    v_permlane32_swap_b32 v16, v18
    v_add_f32 v16, v16, v18
    s_lshl_b32 s{sT0}, s{sHW}, 8
    v_lshlrev_b32 v12, 2, v1
    v_add_u32 v13, s{sT0}, v12
    ds_write_b32 v13, v16 offset:{L_RED}
    s_waitcnt lgkmcnt(0)
    s_barrier
    s_cmp_lg_u32 s{sHW}, 0
    s_cbranch_scc1 L_not2
    ds_read_b32 v16, v12 offset:{L_RED}
    ds_read_b32 v17, v12 offset:{L_RED + 256}
    ds_read_b32 v18, v12 offset:{L_RED + 512}
    ds_read_b32 v19, v12 offset:{L_RED + 768}
    v_lshlrev_b32 v24, 16, v{XR}
    v_lshlrev_b32 v12, 10, v5
    v_lshl_add_u32 v12, v6, 1, v12         ; b*1024 + c*2
    s_lshl_b32 s{sT0}, s{sR}, 5
    s_add_u32 s{sT0}, s{sT0}, {W_H}
    s_waitcnt lgkmcnt(0)
    v_add_f32 v16, v16, v17
    v_add_f32 v18, v18, v19
    v_add_f32 v16, v16, v18
    v_cvt_pk_bf16_f32 v16, v16, v16
    v_lshlrev_b32 v16, 16, v16
    v_add_f32 v16, v16, v24
    v_mov_b32_dpp v17, v16 quad_perm:[1,0,3,2] row_mask:0xf bank_mask:0xf
    v_cvt_pk_bf16_f32 v16, v16, v17
    v_lshlrev_b32 v{HK}, 16, v16
    s_mov_b32 exec_lo, 0x55555555
    s_mov_b32 exec_hi, 0x55555555
    """)
    pub_store([f"buffer_store_dword v16, v12, s[{SRD_WS}:{SRD_WS + 3}], s{sT0} offen"])
    A(f"""
    s_mov_b64 exec, -1
    L_not2:
    s_lshl_b32 s{sT0}, s{sHW}, 10
    s_add_u32 s{sT0}, s{sT0}, {W_H}
    v_mov_b32 v12, v2
    s_cmp_ge_u32 s{sR}, 28
    s_cbranch_scc1 L_t4
    """)
    poll([f"buffer_load_dwordx4 v[8:11], v12, s[{SRD_WS}:{SRD_WS + 3}], s{sT0} offen sc1"], [8, 9, 10, 11], "h")
    stamp()
    stamp(3)
    layernorm(8, 16, 24)
    stamp(3)
    A(f"""
    s_mul_i32 s{sT0}, s{sHW}, {HN_P}
    v_add_u32 v12, s{sT0}, v2
    ds_write_b128 v12, v[8:11] offset:{L_HN}
    v_and_b32 v13, 3, v6
    v_mul_u32_u24 v57, {HHL_P}, v13
    v_lshl_add_u32 v57, v5, 3, v57
    v_add_u32 v57, {L_HHL}, v57
    v_mul_u32_u24 v13, {HN_P}, v13
    v_lshl_add_u32 v13, v5, 3, v13
    s_lshl_b32 s{sT0}, s{sHW}, 8
    s_add_u32 s{sT0}, s{sT0}, {L_HN}
    v_add_u32 v56, s{sT0}, v13
    s_waitcnt lgkmcnt(0)
    s_barrier
    """)
    stamp(3)
    AF, AC = 8, 24
    for s4 in range(4):
        A(f"ds_read2_b64 v[{AF + 4 * s4}:{AF + 4 * s4 + 3}], v56 offset0:{8 * s4} offset1:{8 * s4 + 4}")
    for s4 in range(4):
        A(f"s_waitcnt lgkmcnt(0)" if stamps == 3 else f"s_waitcnt lgkmcnt({3 - s4})")
        for m in range(2):
            for nt in range(4):
                d = AC + 16 * m + 4 * nt
                f = F1 + 16 * (4 * m + s4) + 4 * nt
                A(f"v_mfma_f32_16x16x32_bf16 v[{d}:{d + 3}], v[{AF + 4 * s4}:{AF + 4 * s4 + 3}], v[{f}:{f + 3}], {'0' if s4 == 0 else f'v[{d}:{d + 3}]'}")
    A(f"""
    s_lshl_b32 s{sT0}, s{sHW}, 11
    v_lshlrev_b32 v12, 4, v6
    v_add_u32 v12, s{sT0}, v12
    s_mov_b64 exec, 0xffff
    """)
    stamp(3)
    for T_ in range(8):
        A(f"ds_write_b128 v12, v[{AC + 4 * T_}:{AC + 4 * T_ + 3}] offset:{L_RED1 + 256 * T_}")
    A(f"""
    s_mov_b64 exec, -1
    s_lshl_b32 s{sT0}, s{sHW}, 2
    v_add_u32 v12, s{sT0}, v2              ; f*16 + b*4
    s_mul_i32 s{sT1}, s{sHW}, {HHL_P}
    v_lshlrev_b32 v13, 1, v1
    v_add_u32 v13, s{sT1}, v13
    s_waitcnt lgkmcnt(0)
    s_barrier
    """)
    stamp(3)
    for w in range(4):
        A(f"ds_read_b32 v{16 + w}, v12 offset:{L_RED1 + 2048 * w}")
        A(f"ds_read_b32 v{20 + w}, v12 offset:{L_RED1 + 2048 * w + 1024}")
    A(f"""
    s_waitcnt lgkmcnt(0)
    v_add_f32 v16, v16, v17
    v_add_f32 v18, v18, v19
    v_add_f32 v20, v20, v21
    v_add_f32 v22, v22, v23
    v_add_f32 v16, v16, v18
    v_add_f32 v20, v20, v22
    v_cvt_pk_bf16_f32 v16, v16, v20
    v_lshlrev_b32 v17, 16, v16             ; g
    v_and_b32 v18, s{sMASK}, v16           ; u
    v_mul_f32 v17, 0xbfb8aa3b, v17
    v_min_f32 v17, 0x42fc0000, v17
    v_exp_f32 v17, v17
    v_add_f32 v17, 1.0, v17
    v_rcp_f32 v19, v17
    v_fma_f32 v17, -v17, v19, 1.0
    v_fma_f32 v17, v17, v19, v19
    v_cvt_pk_bf16_f32 v17, v17, v17
    v_lshlrev_b32 v17, 16, v17
    v_mul_f32 v17, v17, v18
    v_cvt_pk_bf16_f32 v17, v17, v17
    ds_write_b16 v13, v17 offset:{L_HHL}
    s_waitcnt lgkmcnt(0)
    s_barrier
    ds_read2_b64 v[8:11], v57 offset0:0 offset1:4
    ds_read2_b64 v[12:15], v57 offset0:8 offset1:12
    """)
    stamp(3)
    for ks in range(2):
        A(f"s_waitcnt lgkmcnt(0)" if stamps == 3 else f"s_waitcnt lgkmcnt({1 - ks})")
        for nt in range(8):
            d = AC + 4 * nt
            f = F2 + 32 * ks + 4 * nt
            A(f"v_mfma_f32_16x16x32_bf16 v[{d}:{d + 3}], v[{8 + 4 * ks}:{11 + 4 * ks}], v[{f}:{f + 3}], {'0' if ks == 0 else f'v[{d}:{d + 3}]'}")
    A(f"""
    s_lshl_b32 s{sT0}, s{sR}, 13
    s_lshl_b32 s{sT1}, s{sHW}, 11
    s_add_u32 s{sT0}, s{sT0}, s{sT1}
    s_add_u32 s{sT0}, s{sT0}, {W_PO}
    v_lshlrev_b32 v12, 4, v6
    s_mov_b64 exec, 0xffff
    """)
    pub_store([f"buffer_store_dwordx4 v[{AC + 4 * nt}:{AC + 4 * nt + 3}], v12, s[{SRD_WS}:{SRD_WS + 3}], s{sT0} offen offset:{256 * nt}" for nt in range(8)])
    A("s_mov_b64 exec, -1")
    A.label("L_t4")
    stamp()
    stamp(3)
    A(f"""
    s_lshl_b32 s{sT0}, s{sHW}, 16
    s_lshl_b32 s{sT1}, s{sR}, 8
    s_add_u32 s{sT0}, s{sT0}, s{sT1}
    s_add_u32 s{sT0}, s{sT0}, {W_PO}
    s_add_u32 s{sT1}, s{sT0}, 32768
    s_cmp_eq_u32 s{sHW}, 3
    s_cselect_b32 s{sT1}, s{sT0}, s{sT1}
    s_cselect_b32 s{sCNT}, 0, 1.0
    v_lshlrev_b32 v12, 13, v5
    v_lshl_add_u32 v12, v6, 4, v12
    """)
    poll([f"buffer_load_dwordx4 v[16:19], v12, s[{SRD_WS}:{SRD_WS + 3}], s{sT0} offen sc1",
          f"buffer_load_dwordx4 v[20:23], v12, s[{SRD_WS}:{SRD_WS + 3}], s{sT1} offen sc1"], list(range(16, 24)), "po")
    stamp()
    A(f"""
    v_fma_f32 v16, v20, s{sCNT}, v16
    v_fma_f32 v17, v21, s{sCNT}, v17
    v_fma_f32 v18, v22, s{sCNT}, v18
    v_fma_f32 v19, v23, s{sCNT}, v19
    v_permlane16_swap_b32 v16, v17
    v_permlane16_swap_b32 v18, v19
    v_add_f32 v16, v16, v17
    v_add_f32 v18, v18, v19
    v_permlane32_swap_b32 v16, v18
    v_add_f32 v16, v16, v18
    s_lshl_b32 s{sT0}, s{sHW}, 8
    v_lshlrev_b32 v12, 2, v1
    v_add_u32 v13, s{sT0}, v12
    ds_write_b32 v13, v16 offset:{L_RED + 1024}
    v_lshlrev_b32 v13, 10, v5
    v_lshl_add_u32 v13, v6, 1, v13
    s_lshl_b32 s{sT0}, s{sR}, 5
    v_add_u32 v13, s{sT0}, v13             ; b*1024 + (16t+n)*2
    s_waitcnt lgkmcnt(0)
    s_barrier
    s_cmp_lg_u32 s{sHW}, 0
    s_cbranch_scc1 L_fin
    ds_read_b32 v16, v12 offset:{L_RED + 1024}
    ds_read_b32 v17, v12 offset:{L_RED + 1024 + 256}
    ds_read_b32 v18, v12 offset:{L_RED + 1024 + 512}
    ds_read_b32 v19, v12 offset:{L_RED + 1024 + 768}
    s_waitcnt lgkmcnt(0)
    v_add_f32 v16, v16, v17
    v_add_f32 v18, v18, v19
    v_add_f32 v16, v16, v18
    v_cvt_pk_bf16_f32 v16, v16, v16
    v_lshlrev_b32 v16, 16, v16
    v_add_f32 v16, v16, v{HK}
    v_cvt_pk_bf16_f32 v16, v16, v16
    global_store_short v13, v16, s[{sOUT}:{sOUT + 1}]
    L_fin:
    """)
    if stamps:
        stamp(0)
        A(f"""
        s_cmp_lg_u32 s{sHW}, 0
        s_cbranch_scc1 L_end
        s_waitcnt lgkmcnt(0)
        s_lshl_b32 s{sT0}, s2, 7
        s_add_u32 s{sT0}, s{sT0}, {STAMP_OFF}
        v_mov_b32 v12, s{sT0}
        s_mov_b64 exec, 1
        """)
        A(f"s_getreg_b32 s{sT1}, hwreg(HW_REG_XCC_ID)")
        A(f"v_mov_b32 v8, s{sT1}")
        A(f"global_store_dword v12, v8, s[{sWS}:{sWS + 1}] offset:120")
        A("s_nop 1")
        for i in range(nst[0]):
            A(f"v_mov_b32 v8, s{sST + 2 * i}")
            A(f"v_mov_b32 v9, s{sST + 2 * i + 1}")
            A(f"global_store_dwordx2 v12, v[8:9], s[{sWS}:{sWS + 1}] offset:{8 * i}")
            A("s_nop 1")
    A.label("L_end")
    body, npad = A.render()
    txt = HEAD + f"""; Override launch geometry by editing the next line (default: block=256,
; grid=ceil(out_elems/256), lds=0). Harness parses it; keep it on one line.
; @launch grid=(256,1,1) block=(512,1,1) lds={LDS_BYTES}
.amdgcn_target "amdgcn-amd-amdhsa--gfx950"
.text
.globl {KN}
.p2align 8
.type {KN},@function
{KN}:
; ---------------------------------------------------------------------------------------------
; One persistent launch, 256 workgroups (one per CU) x 8 waves: waves 0-3 stream K then V of one
; half-head (4096 keys) through a register ring; waves 4-7 are helpers (LayerNorm + q projection,
; softmax statistics exchange with the partner half, weight preloads, row transfers between the
; eight workgroups of a group when they drift apart, output projection and the GLU tail).
; Every rounding point of the bf16 reference is reproduced.  Hand-offs between workgroups use
; words that this launch itself cleared (arrival counter in d_debug) or flags in d_debug; plain
; (L2-local) stores are only used after the writers/readers proved to share an XCC, otherwise a
; write-through path or a local recomputation is taken.  All spins are bounded.
; ---------------------------------------------------------------------------------------------
{body}
    s_endpgm
.section .rodata,"a"
.p2align 6
.amdhsa_kernel {KN}
  .amdhsa_next_free_vgpr 256
  .amdhsa_next_free_sgpr 102
  .amdhsa_accum_offset 256
  .amdhsa_group_segment_fixed_size 0
  .amdhsa_kernarg_size 96
  .amdhsa_float_denorm_mode_32 3
  .amdhsa_user_sgpr_count 2
  .amdhsa_user_sgpr_kernarg_segment_ptr 1
  .amdhsa_system_sgpr_workgroup_id_x 1
.end_amdhsa_kernel
"""
    return txt, npad, nst[0]


if __name__ == "__main__":
    out = sys.argv[1]
    kv = dict(x.split("=") for x in sys.argv[2:])
    txt, npad, ns = gen(DIST=int(kv.get("dist", 2)), stamps=int(kv.get("stamps", 0)), local=bool(int(kv.get("local", 0))), wnt=kv.get("wnt", "nt"), qnt=kv.get("qnt", ""), fill=int(kv.get("fill", 0)), prio=int(kv.get("prio", 0)), deep=int(kv.get("deep", 0)), prog=int(kv.get("prog", 0)), LEAD=int(kv.get("lead", 8)), b0=int(kv.get("b0", 0)), skip=kv.get("skip", ""), rowt=float(kv.get("rowt", 109.0)), GMAX=int(kv.get("gmax", 8)), asleep=int(kv.get("asleep", 0)), qto=int(kv.get("qto", 1200)), psl=int(kv.get("psl", 8)), tsl=int(kv.get("tsl", 8)), isl=int(kv.get("isl", 8)), apre=int(kv.get("apre", 0)), drow=int(kv.get("drow", 0)), warm=int(kv.get("warm", 0)), PST=int(kv.get("pst", 24)))
    open(out, "w").write(txt)
    print(out, "pads", npad, "stamps", ns, "bytes", len(txt), "lds", LDS_BYTES)
```
